```python
import torch

def _softmax(x, axis=-1):
    return torch.softmax(x, dim=axis)
def _gelu(x):
    return torch.nn.functional.gelu(x, approximate="tanh")
def _silu(x):
    return torch.nn.functional.silu(x)
def _sigmoid(x):
    return torch.sigmoid(x)
def _layernorm(x, axis=-1, eps=1e-5):
    m = x.mean(dim=axis, keepdim=True)
    v = x.var(dim=axis, keepdim=True, unbiased=False)
    return (x - m) / torch.sqrt(v + eps)
def _scatter_add(tgt, idx, src, axis=0):
    return tgt.clone().index_add_(axis, idx, src)
def _segment_sum(src, seg, n):
    out = torch.zeros((n,) + src.shape[1:], dtype=src.dtype)
    return out.index_add_(0, seg, src)
def _pad(x, pw):
    flat = tuple(v for pair in reversed(pw) for v in pair)
    return torch.nn.functional.pad(x, flat)

kernel_name = 'sequential_preLN__mha_block_cached__swiglu_ffn__decode'

def setup_inputs():

    _w = (lambda a: (lambda t: t.to(torch.bfloat16) if t.is_floating_point() else t)(torch.as_tensor(a)))
    def _A_setup():
        B, Sq, D = 8, 1, 512
        H, Sk, Dh = 32, 4096, 128
        return {
            "x": _w((lambda *s: torch.randn(*s, dtype=torch.bfloat16) * 0.05)(B, Sq, D)),
            "k_cache": _w((lambda *s: torch.randn(*s, dtype=torch.bfloat16) * 3.2)(B, H, Sk, Dh)),
            "v_cache": _w((lambda *s: torch.randn(*s, dtype=torch.bfloat16) * 0.4)(B, H, Sk, Dh)),
            "wq": _w((lambda *s: torch.randn(*s, dtype=torch.bfloat16) * 3.2)(D, H * Dh) * (D ** -0.5)),
            "wo": _w((lambda *s: torch.randn(*s, dtype=torch.bfloat16) * 0.4)(H * Dh, D) * ((H * Dh) ** -0.5)),
        }
    _A_in = _A_setup()

    def _B_setup():
        B, S, D, F = 8, 1, 512, 1376
        return {
            "x": _w((lambda *s: torch.randn(*s, dtype=torch.bfloat16) * 0.05)(B, S, D)),
            "w_gate": _w((lambda *s: torch.randn(*s, dtype=torch.bfloat16) * 0.05)(D, F)),
            "w_up": _w((lambda *s: torch.randn(*s, dtype=torch.bfloat16) * 0.05)(D, F)),
            "w_down": _w((lambda *s: torch.randn(*s, dtype=torch.bfloat16) * 0.05)(F, D)),
        }
    _B_in = _B_setup()

    return {
        "A_x": _A_in["x"],
        "A_k_cache": _A_in["k_cache"],
        "A_v_cache": _A_in["v_cache"],
        "A_wq": _A_in["wq"],
        "A_wo": _A_in["wo"],
        "B_x": _B_in["x"],
        "B_w_gate": _B_in["w_gate"],
        "B_w_up": _B_in["w_up"],
        "B_w_down": _B_in["w_down"],
    }

def reference(A_x, A_k_cache, A_v_cache, A_wq, A_wo, B_x, B_w_gate, B_w_up, B_w_down):
    def _A_ref(x, k_cache, v_cache, wq, wo):
        B, Sq, D = x.shape
        H, Dh = 32, 128
        q = (lambda x, *d: x.permute(*d))((x @ wq).reshape(B, Sq, H, Dh), 0, 2, 1, 3)
        scores = torch.einsum("bhqd,bhkd->bhqk", q, k_cache) * (Dh ** -0.5)
        p = _softmax(scores, axis=-1)
        o = torch.einsum("bhqk,bhkd->bhqd", p, v_cache)
        return (lambda x, *d: x.permute(*d))(o, 0, 2, 1, 3).reshape(B, Sq, H * Dh) @ wo

    def _B_ref(x, w_gate, w_up, w_down):
        g = _silu(x @ w_gate)
        u = x @ w_up
        return (g * u) @ w_down

    x = A_x
    h = x + _A_ref(_layernorm(x, axis=-1), A_k_cache, A_v_cache, A_wq, A_wo)
    h2 = h + _B_ref(_layernorm(h, axis=-1), B_w_gate, B_w_up, B_w_down)
    return h2
```

```python
import re

TRANS = ("v_exp_f32", "v_log_f32", "v_rcp_f32", "v_rsq_f32", "v_sqrt_f32", "v_sin_f32", "v_cos_f32")

def regs_of(tok):
    tok = tok.strip()
    m = re.fullmatch(r"-?\|?([vs])(\d+)\|?", tok)
    if m: return [(m.group(1), int(m.group(2)))]
    m = re.fullmatch(r"([vs])\[(\d+):(\d+)\]", tok)
    if m: return [(m.group(1), i) for i in range(int(m.group(2)), int(m.group(3)) + 1)]
    if tok == "vcc": return [("s", 106), ("s", 107)]
    if tok == "exec": return [("s", 126), ("s", 127)]
    return []

def split_ops(s):
    out, depth, cur = [], 0, ""
    for ch in s:
        if ch == "[": depth += 1
        if ch == "]": depth -= 1
        if ch == "," and depth == 0:
            out.append(cur); cur = ""
        else:
            cur += ch
    out.append(cur)
    return [o.strip() for o in out if o.strip()]

class Ins:
    def __init__(self, text):
        self.text = text
        t = text.split(";")[0].strip()
        self.is_label = t.endswith(":")
        self.mn = t.split()[0] if t and not self.is_label else ""
        rest = t[len(self.mn):].strip() if self.mn else ""
        ops = split_ops(rest)
        if ops:
            last = ops[-1].split()
            ops[-1] = last[0] if last else ""
            self.mods = " ".join(last[1:])
        else:
            self.mods = ""
        self.ops = ops
        mn = self.mn
        self.valu = mn.startswith("v_")
        self.dpp = "_dpp" in mn or "row_" in self.mods or "quad_perm" in self.mods
        self.trans = any(mn.startswith(x) for x in TRANS)
        self.dot = mn.startswith("v_dot")
        self.base = mn.replace("_dpp", "").replace("_e32", "").replace("_e64", "")
        self.vmem = mn.startswith("buffer_") or mn.startswith("global_")
        self.ds = mn.startswith("ds_")
        self.salu = mn.startswith("s_")
        self.permlane = mn.startswith("v_permlane")
        self.readlane = mn.startswith("v_readlane") or mn.startswith("v_readfirstlane")
        w, r = [], []
        o = [regs_of(x) for x in ops]
        if self.valu:
            if self.permlane:
                w = o[0] + o[1]; r = o[0] + o[1]
            elif mn.startswith("v_cmp"):
                w = o[0]; r = sum(o[1:], [])
                if mn.startswith("v_cmpx"): w = w + [("s",126),("s",127)]
            else:
                w = o[0]; r = sum(o[1:], [])
                if self.base in ("v_fmac_f32", "v_dot2c_f32_bf16") or (self.dpp and ("bank_mask" in self.mods)):
                    r = r + o[0]
                if self.base.startswith("v_cndmask") and len(ops) == 3: r = r + [("s",106),("s",107)]
                if self.base in ("v_add_co_u32","v_addc_co_u32","v_sub_co_u32"): w = o[0] + o[1]; r = sum(o[2:], [])
            self.srcs = o[1:] if len(o) > 1 else []
        elif self.vmem:
            if "store" in mn or ("atomic" in mn):
                r = sum(o, [])
                if "atomic" in mn and "sc0" in self.mods: w = o[0]
            else:
                w = o[0]; r = sum(o[1:], [])
        elif self.ds:
            if "write" in mn: r = sum(o, [])
            else: w = o[0]; r = sum(o[1:], [])
        elif self.salu:
            if mn.startswith("s_cmp") or mn.startswith("s_cbranch") or mn in ("s_waitcnt","s_barrier","s_nop","s_endpgm","s_branch","s_setprio","s_sleep"):
                r = sum(o, [])
            else:
                w = o[0] if o else []; r = sum(o[1:], [])
        self.w, self.r = w, r
    def states(self):
        if self.is_label or not self.mn: return 0
        if self.mn == "s_nop": return int(self.ops[0], 0) + 1
        return 1

def required(prod, cons):
    need = 0
    pw = set(prod.w)
    if prod.valu and not prod.mn.startswith("v_mfma"):
        vw = {x for x in pw if x[0] == "v"}
        sw = {x for x in pw if x[0] == "s"}
        cr = set(cons.r); cw = set(cons.w)
        if vw & cr:
            if cons.dpp:
                if cons.srcs and vw & set(cons.srcs[0]): need = max(need, 2)
            if cons.permlane: need = max(need, 2)
            if cons.readlane: need = max(need, 1)
            if prod.trans and cons.valu and not cons.trans: need = max(need, 1)
        if prod.dot and cons.valu and (vw & (cr | cw)):
            if cons.base == prod.base:
                ab = set(sum(cons.srcs[:2], []))
                if vw & ab: need = max(need, 3)
            else:
                need = max(need, 3)
        if prod.dot and (cons.vmem or cons.ds) and (vw & cr): need = max(need, 3)
        if sw & cr:
            if cons.valu:
                need = max(need, 2)
                if cons.mn.startswith("v_readlane") and len(cons.ops) == 3 and sw & set(regs_of(cons.ops[2])): need = max(need, 4)
            if cons.vmem: need = max(need, 5)
    if prod.vmem and ("store" in prod.mn) and ("x4" in prod.mn or "x3" in prod.mn):
        data = set(regs_of(prod.ops[0]))
        if data & set(cons.w): need = max(need, 2 if cons.valu else 1)
    return need

class Asm:
    def __init__(self):
        self.lines = []
    def __call__(self, text):
        for l in text.split("\n"):
            l = l.strip()
            if l: self.lines.append(l)
    def raw(self, text):
        self.lines.append(("RAW", text))
    def finish(self):
        out = []
        hist = []
        for l in self.lines:
            if isinstance(l, tuple):
                out.append(l[1]); hist = []; continue
            ins = Ins(l)
            if ins.is_label:
                out.append(l)
                continue
            dist = 0; pad = 0
            for p in reversed(hist):
                n = required(p, ins)
                if n > dist: pad = max(pad, n - dist)
                dist += p.states()
                if dist >= 6: break
            if pad > 0:
                nop = Ins(f"s_nop {pad-1}")
                out.append("  " + nop.text); hist.append(nop)
            out.append("  " + l)
            hist.append(ins)
            hist = hist[-12:]
        return "\n".join(out) + "\n"
```

```python
import sys
from asmlib import Asm

NAME = "sequential_preLN__mha_block_cached__swiglu_ffn__decode_kernel"
K2N = "ffn_mid_kernel"
K3N = "ffn_out_kernel"

WS_PART1 = 0x0
WS_H     = 0x80000
WS_LN2P  = 0x82000
WS_PART2 = 0x100000
NW2 = 86

HEADER = open("sequential_preLN__mha_block_cached__swiglu_ffn__decode.s.ref").read().split("; Override launch")[0]

class VM:
    def __init__(self, a): self.q = []; self.a = a
    def issue(self, tag, n=1): self.q += [tag] * n
    def wait(self, tag):
        idx = max(i for i, t in enumerate(self.q) if t == tag)
        n = len(self.q) - 1 - idx
        self.a(f"s_waitcnt vmcnt({n})")
        self.q = self.q[idx + 1:]
    def drain(self):
        self.a("s_waitcnt vmcnt(0)"); self.q = []

def srd(a, d, lo, hi, size):
    a(f"s_mov_b32 s{d}, s{lo}")
    a(f"s_and_b32 s{d+1}, s{hi}, 0xffff")
    a(f"s_mov_b32 s{d+2}, {size}")
    a(f"s_mov_b32 s{d+3}, 0x00020000")

def row_reduce(a, op, src, t0, t1):
    a(f"{op}_dpp v{t0}, v{src}, v{src} quad_perm:[1,0,3,2] row_mask:0xf bank_mask:0xf")
    a(f"{op}_dpp v{t1}, v{t0}, v{t0} quad_perm:[2,3,0,1] row_mask:0xf bank_mask:0xf")
    a(f"{op}_dpp v{t0}, v{t1}, v{t1} row_half_mirror row_mask:0xf bank_mask:0xf")
    a(f"{op}_dpp v{t1}, v{t0}, v{t0} row_mirror row_mask:0xf bank_mask:0xf")

def wave_reduce(a, op, src, dst, t0, t1, sb):
    row_reduce(a, op, src, t0, t1)
    for i in range(4):
        a(f"v_readlane_b32 s{sb+i}, v{t1}, {16*i}")
    a(f"v_mov_b32 v{dst}, s{sb}")
    for i in range(1, 4):
        a(f"{op} v{dst}, s{sb+i}, v{dst}")

def bf16r(a, dst, src, smask):
    a(f"v_cvt_pk_bf16_f32 v{dst}, v{src}, v{src}")
    a(f"v_and_b32 v{dst}, s{smask}, v{dst}")

def layernorm(a, X, T, smask, sb):
    s0, s1, t0, t1, mean, mbf, sd, rs = T, T+1, T+2, T+3, T+4, T+5, T+6, T+7
    D = T + 8
    a(f"v_add_f32 v{s0}, v{X}, v{X+1}")
    a(f"v_add_f32 v{s1}, v{X+2}, v{X+3}")
    a(f"v_add_f32 v{s0}, v{s0}, v{X+4}")
    a(f"v_add_f32 v{s1}, v{s1}, v{X+5}")
    a(f"v_add_f32 v{s0}, v{s0}, v{X+6}")
    a(f"v_add_f32 v{s1}, v{s1}, v{X+7}")
    a(f"v_add_f32 v{s0}, v{s0}, v{s1}")
    wave_reduce(a, "v_add_f32", s0, mean, t0, t1, sb)
    a(f"v_mul_f32 v{mean}, 0x3b000000, v{mean}")
    a(f"v_mov_b32 v{s0}, 0")
    a(f"v_mov_b32 v{s1}, 0")
    for j in range(0, 8, 2):
        a(f"v_sub_f32 v{D}, v{X+j}, v{mean}")
        a(f"v_sub_f32 v{D+1}, v{X+j+1}, v{mean}")
        a(f"v_fmac_f32 v{s0}, v{D}, v{D}")
        a(f"v_fmac_f32 v{s1}, v{D+1}, v{D+1}")
    a(f"v_add_f32 v{s0}, v{s0}, v{s1}")
    wave_reduce(a, "v_add_f32", s0, sd, t0, t1, sb)
    a(f"v_mul_f32 v{sd}, 0x3b000000, v{sd}")
    bf16r(a, sd, sd, smask)
    a(f"v_add_f32 v{sd}, 0x3727c5ac, v{sd}")
    bf16r(a, sd, sd, smask)
    a(f"v_sqrt_f32 v{sd}, v{sd}")
    bf16r(a, sd, sd, smask)
    bf16r(a, mbf, mean, smask)
    a(f"v_rcp_f32 v{rs}, v{sd}")
    for j in range(8):
        a(f"v_sub_f32 v{D}, v{X+j}, v{mbf}")
        bf16r(a, D, D, smask)
        a(f"v_mul_f32 v{D+1}, v{D}, v{rs}")
        a(f"v_fma_f32 v{D+2}, -v{D+1}, v{sd}, v{D}")
        a(f"v_fma_f32 v{D+1}, v{D+2}, v{rs}, v{D+1}")
        bf16r(a, X+j, D+1, smask)

def kd(name, vgpr, sgpr=96):
    acc = (vgpr + 3) // 4 * 4
    return f""".p2align 6
.amdhsa_kernel {name}
  .amdhsa_next_free_vgpr {vgpr}
  .amdhsa_next_free_sgpr {sgpr}
  .amdhsa_accum_offset {acc}
  .amdhsa_group_segment_fixed_size 0
  .amdhsa_kernarg_size 96
  .amdhsa_user_sgpr_count 2
  .amdhsa_user_sgpr_kernarg_segment_ptr 1
  .amdhsa_system_sgpr_workgroup_id_x 1
  .amdhsa_float_denorm_mode_32 3
.end_amdhsa_kernel
"""

def gen_k1(a, NS=3):
    L_LN, L_QP, L_RED, L_OP, L_WO, L_LA, L_FLAG = 0, 32768, 40960, 41216, 0, 32768, 49408
    lds_total = 49664
    vm = VM(a)
    a.raw(f".globl {NAME}\n.p2align 8\n.type {NAME},@function\n{NAME}:")
    a("s_cmp_ge_u32 s2, 256")
    a("s_cbranch_scc1 K1_END")
    a("s_load_dwordx16 s[36:51], s[0:1], 0")
    a("s_load_dwordx8 s[52:59], s[0:1], 64")
    V_LANE, V_C, V_R, V_KV = 1, 2, 3, 4
    Q = 5
    MX = 9
    XR = 10
    W = 16
    KB = 48
    S = KB + 16 * NS
    ACC = S + 16
    T = ACC + 8
    assert T + 8 <= 128 and NS == 3
    a(f"v_and_b32 v{V_LANE}, 63, v0")
    a(f"v_lshrrev_b32 v{T}, 6, v0")
    a(f"v_and_b32 v{V_C}, 15, v0")
    a(f"v_readfirstlane_b32 s34, v{T}")
    a(f"v_lshrrev_b32 v{V_R}, 4, v{V_LANE}")
    a(f"v_lshlrev_b32 v{V_KV}, 16, v{T}")
    a(f"v_lshl_add_u32 v{V_KV}, v{V_LANE}, 4, v{V_KV}")
    a("s_lshr_b32 s32, s2, 5")
    a("s_and_b32 s33, s2, 31")
    a("s_mov_b32 s35, 0xffff0000")
    SM = 35
    a("s_waitcnt lgkmcnt(0)")
    srd(a, 4, 36, 37, 8192)
    a("s_lshl_b32 s3, s2, 20")
    a("s_lshr_b32 s60, s2, 12")
    a("s_add_u32 s38, s38, s3\ns_addc_u32 s39, s39, s60")
    a("s_add_u32 s40, s40, s3\ns_addc_u32 s41, s41, s60")
    srd(a, 8, 38, 39, 0x100000)
    srd(a, 12, 40, 41, 0x100000)
    srd(a, 16, 42, 43, 0x400000)
    srd(a, 20, 44, 45, 0x400000)
    srd(a, 24, 58, 59, 0x400000)
    srd(a, 28, 56, 57, 256)
    a(f"v_lshlrev_b32 v{T}, 4, v{V_LANE}")
    a("s_lshl_b32 s3, s32, 10")
    a(f"buffer_load_dwordx4 v[{XR}:{XR+3}], v{T}, s[4:7], s3 offen"); vm.issue("x")
    a("s_lshl_b32 s3, s34, 5")
    a(f"v_add_u32 v{T+1}, s3, v{V_R}")
    a(f"v_lshlrev_b32 v{T+1}, 13, v{T+1}")
    a(f"v_lshl_add_u32 v{T+1}, v{V_C}, 4, v{T+1}")
    a("s_lshl_b32 s3, s33, 8")
    for i in range(8):
        a(f"buffer_load_dwordx4 v[{W+4*i}:{W+4*i+3}], v{T+1}, s[16:19], s3 offen"); vm.issue("wq")
        if i < 7: a("s_add_u32 s3, s3, 32768")
    NG = 16
    def issue_group(gi):
        sr = "s[8:11]" if gi < NG else "s[12:15]"
        g = gi % NG
        base = KB + 16 * (gi % NS)
        a(f"s_movk_i32 s61, {g*4096}" if g*4096 < 32768 else f"s_mov_b32 s61, {g*4096}")
        for k in range(4):
            a(f"buffer_load_dwordx4 v[{base+4*k}:{base+4*k+3}], v{V_KV}, {sr}, s61 offen offset:{1024*k} nt")
        vm.issue(("g", gi), 4)
    for gi in range(NS): issue_group(gi)
    vm.wait("x")
    X = S
    for d in range(4):
        a(f"v_lshlrev_b32 v{X+2*d}, 16, v{XR+d}")
        a(f"v_and_b32 v{X+2*d+1}, s{SM}, v{XR+d}")
    layernorm(a, X, S + 8, SM, 64)
    a("s_lshl_b32 s3, s34, 11")
    a(f"v_lshl_add_u32 v{T}, v{V_LANE}, 5, s3")
    a(f"ds_write_b128 v{T}, v[{X}:{X+3}] offset:{L_LN}")
    a(f"ds_write_b128 v{T}, v[{X+4}:{X+7}] offset:{L_LN+16}")
    a("s_lshl_b32 s62, s34, 7")
    a("s_add_u32 s3, s3, s62")
    a(f"v_lshl_add_u32 v{T}, v{V_R}, 2, s3")
    a("s_waitcnt lgkmcnt(0)")
    LNV = S + 8
    for i in range(8):
        a(f"ds_read_b32 v{LNV+i}, v{T} offset:{L_LN+16*i}")
    vm.wait("wq")
    a("s_waitcnt lgkmcnt(0)")
    QA = ACC
    for j in range(8): a(f"v_mov_b32 v{QA+j}, 0")
    for i in range(8):
        a(f"v_lshrrev_b32 v{T+1}, 16, v{LNV+i}")
        for d in range(4):
            a(f"v_dot2_f32_bf16 v{QA+2*d}, v{W+4*i+d}, v{T+1}, v{QA+2*d}")
            a(f"v_dot2_f32_bf16 v{QA+2*d+1}, v{W+4*i+d}, v{LNV+i}, v{QA+2*d+1}")
    a("s_lshl_b32 s3, s33, 7")
    a("s_lshl_b32 s62, s34, 3")
    a("s_add_u32 s3, s3, s62")
    a("s_lshl_b32 s3, s3, 10")
    a(f"v_lshlrev_b32 v{T+2}, 4, v{V_LANE}")
    for i in range(8):
        if i == 4: a("s_add_u32 s3, s3, 4096")
        a(f"buffer_load_dwordx4 v[{W+4*i}:{W+4*i+3}], v{T+2}, s[20:23], s3 offen offset:{1024*(i%4)}"); vm.issue("wo")
    def rows_reduce8(A8):
        for p in range(4):
            a(f"v_permlane32_swap_b32 v{A8+2*p}, v{A8+2*p+1}")
        for p in range(4):
            a(f"v_add_f32 v{A8+2*p}, v{A8+2*p}, v{A8+2*p+1}")
        a(f"v_permlane16_swap_b32 v{A8}, v{A8+2}")
        a(f"v_permlane16_swap_b32 v{A8+4}, v{A8+6}")
        a(f"v_add_f32 v{A8}, v{A8}, v{A8+2}")
        a(f"v_add_f32 v{A8+4}, v{A8+4}, v{A8+6}")
    rows_reduce8(QA)
    VPA = 14
    a(f"v_and_b32 v{T}, 1, v{V_R}")
    a(f"v_lshlrev_b32 v{T}, 3, v{T}")
    a(f"v_lshrrev_b32 v{T+1}, 1, v{V_R}")
    a(f"v_lshl_add_u32 v{T}, v{T+1}, 2, v{T}")
    a(f"v_lshl_add_u32 v{T}, v{V_C}, 5, v{T}")
    a("s_lshl_b32 s3, s34, 9")
    a(f"v_add_u32 v{VPA}, s3, v{T}")
    a(f"ds_write_b32 v{VPA}, v{QA} offset:{L_QP}")
    a(f"ds_write_b32 v{VPA}, v{QA+4} offset:{L_QP+16}")
    a("s_waitcnt lgkmcnt(0)")
    a("s_barrier")
    a(f"v_lshlrev_b32 v{T}, 3, v{V_LANE}")
    for half in range(2):
        for w in range(8):
            a(f"ds_read_b64 v[{S+2*w}:{S+2*w+1}], v{T} offset:{L_QP+(half*8+w)*512}")
        a("s_waitcnt lgkmcnt(0)")
        for e in range(2):
            a(f"v_add_f32 v{S+e}, v{S+e}, v{S+2+e}")
            a(f"v_add_f32 v{S+4+e}, v{S+4+e}, v{S+6+e}")
            a(f"v_add_f32 v{S+8+e}, v{S+8+e}, v{S+10+e}")
            a(f"v_add_f32 v{S+12+e}, v{S+12+e}, v{S+14+e}")
            a(f"v_add_f32 v{S+e}, v{S+e}, v{S+4+e}")
            a(f"v_add_f32 v{S+8+e}, v{S+8+e}, v{S+12+e}")
            if half == 0:
                a(f"v_add_f32 v{ACC+e}, v{S+e}, v{S+8+e}")
            else:
                a(f"v_add_f32 v{S+e}, v{S+e}, v{S+8+e}")
                a(f"v_add_f32 v{ACC+e}, v{ACC+e}, v{S+e}")
    a(f"v_cvt_pk_bf16_f32 v{ACC}, v{ACC}, v{ACC+1}")
    a(f"v_lshlrev_b32 v{T}, 4, v{V_C}")
    for k in range(4):
        a(f"v_add_u32 v{T+1+k}, {4*k}, v{T}")
    for k in range(4):
        a(f"ds_bpermute_b32 v{Q+k}, v{T+1+k}, v{ACC}")
    a("s_waitcnt lgkmcnt(0)")
    a(f"v_mov_b32 v{MX}, 0xff800000")
    a("s_mov_b32 s63, 0x3db504f3")
    A0, B0, C0 = T, T + 4, T + 6
    for g in range(NG):
        vm.wait(("g", g))
        base = KB + 16 * (g % NS)
        for d in range(4):
            for k in range(4):
                c = "0" if d == 0 else f"v{A0+k}"
                a(f"v_dot2_f32_bf16 v{A0+k}, v{base+4*k+d}, v{Q+d}, {c}")
        issue_group(g + NS)
        a(f"v_add_f32_dpp v{B0}, v{A0}, v{A0} row_ror:8 row_mask:0xf bank_mask:0x3")
        a(f"v_add_f32_dpp v{B0+1}, v{A0+2}, v{A0+2} row_ror:8 row_mask:0xf bank_mask:0x3")
        a(f"v_add_f32_dpp v{B0}, v{A0+1}, v{A0+1} row_ror:8 row_mask:0xf bank_mask:0xc")
        a(f"v_add_f32_dpp v{B0+1}, v{A0+3}, v{A0+3} row_ror:8 row_mask:0xf bank_mask:0xc")
        a(f"v_add_f32_dpp v{C0}, v{B0}, v{B0} row_half_mirror row_mask:0xf bank_mask:0x5")
        a(f"v_add_f32_dpp v{C0}, v{B0+1}, v{B0+1} row_half_mirror row_mask:0xf bank_mask:0xa")
        a(f"v_add_f32_dpp v{C0+1}, v{C0}, v{C0} quad_perm:[1,0,3,2] row_mask:0xf bank_mask:0xf")
        a(f"v_add_f32_dpp v{C0}, v{C0+1}, v{C0+1} quad_perm:[2,3,0,1] row_mask:0xf bank_mask:0xf")
        bf16r(a, C0, C0, SM)
        a(f"v_mul_f32 v{C0}, s63, v{C0}")
        bf16r(a, S + g, C0, SM)
        a(f"v_max_f32 v{MX}, v{MX}, v{S+g}")
    LOG2E = "0x3fb8aa3b"
    MW = T + 4; SW = T + 5
    wave_reduce(a, "v_max_f32", MX, MW, T, T + 1, 64)
    a(f"s_mov_b32 s63, {LOG2E}")
    a(f"v_mov_b32 v{ACC}, 0")
    a(f"v_mov_b32 v{ACC+1}, 0")
    for g in range(NG):
        t = T + (g % 2)
        a(f"v_sub_f32 v{t}, v{S+g}, v{MW}")
        a(f"v_mul_f32 v{t}, s63, v{t}")
        a(f"v_exp_f32 v{t}, v{t}")
        a(f"v_add_f32 v{ACC+(g%2)}, v{ACC+(g%2)}, v{t}")
    a(f"v_add_f32 v{ACC}, v{ACC}, v{ACC+1}")
    wave_reduce(a, "v_add_f32", ACC, SW, T, T + 1, 64)
    a(f"v_mul_f32 v{SW}, 0.25, v{SW}") if False else a(f"v_mul_f32 v{SW}, 0x3e800000, v{SW}")
    a("s_lshl_b32 s3, s34, 3")
    a(f"v_mov_b32 v{T}, s3")
    a(f"ds_write_b64 v{T}, v[{MW}:{SW}] offset:{L_RED}")
    a("s_waitcnt lgkmcnt(0)")
    a("s_barrier")
    a(f"v_lshlrev_b32 v{T}, 3, v{V_C}")
    a(f"ds_read_b64 v[{T+2}:{T+3}], v{T} offset:{L_RED}")
    a("s_waitcnt lgkmcnt(0)")
    GM = ACC + 2; GS = ACC + 3; RS = ACC + 4
    row_reduce(a, "v_max_f32", T + 2, T, GM)
    a(f"v_sub_f32 v{T}, v{T+2}, v{GM}")
    a(f"v_mul_f32 v{T}, s63, v{T}")
    a(f"v_exp_f32 v{T}, v{T}")
    a(f"v_mul_f32 v{T+3}, v{T+3}, v{T}")
    row_reduce(a, "v_add_f32", T + 3, T, GS)
    a(f"v_rcp_f32 v{RS}, v{GS}")
    for g in range(NG):
        t = T + 3 * (g % 2)
        a(f"v_sub_f32 v{t}, v{S+g}, v{GM}")
        a(f"v_mul_f32 v{t}, s63, v{t}")
        a(f"v_exp_f32 v{t}, v{t}")
        a(f"v_mul_f32 v{t+1}, v{t}, v{RS}")
        a(f"v_fma_f32 v{t+2}, -v{t+1}, v{GS}, v{t}")
        a(f"v_fma_f32 v{t+1}, v{t+2}, v{RS}, v{t+1}")
        bf16r(a, S + g, t + 1, SM)
    for j in range(8): a(f"v_mov_b32 v{ACC+j}, 0")
    BANK = [0, 2, 1, 3]
    for g in range(NG):
        PL = T + (g % 2)
        a(f"v_lshrrev_b32 v{PL}, 16, v{S+g}")
        vm.wait(("g", NG + g))
        base = KB + 16 * ((NG + g) % NS)
        for k in range(4):
            bc = 4 * BANK[k]
            for d in range(4):
                a(f"v_dot2c_f32_bf16_dpp v{ACC+2*d}, v{PL}, v{base+4*k+d} row_newbcast:{bc} row_mask:0xf bank_mask:0xf")
                a(f"v_dot2c_f32_bf16_dpp v{ACC+2*d+1}, v{S+g}, v{base+4*k+d} row_newbcast:{bc} row_mask:0xf bank_mask:0xf")
        if NG + g + NS < 2 * NG: issue_group(NG + g + NS)
    rows_reduce8(ACC)
    a(f"ds_write_b32 v{VPA}, v{ACC} offset:{L_OP}")
    a(f"ds_write_b32 v{VPA}, v{ACC+4} offset:{L_OP+16}")
    a("s_waitcnt lgkmcnt(0)")
    a("s_barrier")
    a(f"v_and_b32 v{T}, 7, v{V_LANE}")
    a("s_lshl_b32 s3, s34, 5")
    a(f"v_lshl_add_u32 v{T}, v{T}, 2, s3")
    for w in range(16):
        a(f"ds_read_b32 v{S+w}, v{T} offset:{L_OP+w*512}")
    a("s_waitcnt lgkmcnt(0)")
    for st in (8, 4, 2, 1):
        for j in range(st):
            a(f"v_add_f32 v{S+j}, v{S+j}, v{S+j+st}")
    bf16r(a, S, S, SM)
    for i in range(8):
        a(f"v_readlane_b32 s{64+i}, v{S}, {i}")
    for i in range(8):
        a(f"s_lshr_b32 s{72+i}, s{64+i}, 16")
    vm.wait("wo") if "wo" in vm.q else None
    for j in range(8): a(f"v_mov_b32 v{ACC+j}, 0")
    for i in range(8):
        for d in range(4):
            a(f"v_dot2_f32_bf16 v{ACC+2*d}, v{W+4*i+d}, s{72+i}, v{ACC+2*d}")
            a(f"v_dot2_f32_bf16 v{ACC+2*d+1}, v{W+4*i+d}, s{64+i}, v{ACC+2*d+1}")
    a("s_lshl_b32 s3, s34, 11")
    a(f"v_lshl_add_u32 v{T}, v{V_LANE}, 5, s3")
    a(f"ds_write_b128 v{T}, v[{ACC}:{ACC+3}] offset:{L_WO}")
    a(f"ds_write_b128 v{T}, v[{ACC+4}:{ACC+7}] offset:{L_WO+16}")
    a("s_waitcnt lgkmcnt(0)")
    a("s_barrier")
    a("s_cmp_ge_u32 s34, 8")
    a("s_cbranch_scc1 K1_SKIP_PART")
    a(f"v_lshlrev_b32 v{T}, 2, v0")
    for w in range(16):
        a(f"ds_read_b32 v{S+w}, v{T} offset:{L_WO+w*2048}")
    a("s_waitcnt lgkmcnt(0)")
    for st in (8, 4, 2, 1):
        for j in range(st):
            a(f"v_add_f32 v{S+j}, v{S+j}, v{S+j+st}")
    a("s_lshl_b32 s3, s2, 11")
    a(f"buffer_store_dword v{S}, v{T}, s[24:27], s3 offen offset:{WS_PART1} sc1")
    a("s_waitcnt vmcnt(0)")
    a("K1_SKIP_PART:")
    a("s_barrier")
    a("s_cmp_lg_u32 s34, 0")
    a("s_cbranch_scc1 K1_SKIP_ATOM")
    a(f"v_cmp_eq_u32 vcc, 0, v0")
    a("s_and_saveexec_b64 s[66:67], vcc")
    a(f"v_mov_b32 v{T}, 1")
    a("s_lshl_b32 s3, s32, 2")
    a(f"v_mov_b32 v{T+1}, s3")
    a(f"buffer_atomic_add v{T}, v{T+1}, s[28:31], 0 offen sc0")
    a("s_waitcnt vmcnt(0)")
    a(f"v_mov_b32 v{T+1}, 0")
    a(f"ds_write_b32 v{T+1}, v{T} offset:{L_FLAG}")
    a("s_waitcnt lgkmcnt(0)")
    a("s_mov_b64 exec, s[66:67]")
    a("K1_SKIP_ATOM:")
    a("s_barrier")
    a(f"v_mov_b32 v{T+1}, 0")
    a(f"ds_read_b32 v{T}, v{T+1} offset:{L_FLAG}")
    a("s_waitcnt lgkmcnt(0)")
    a(f"v_readfirstlane_b32 s3, v{T}")
    a("s_cmp_lg_u32 s3, 31")
    a("s_cbranch_scc1 K1_END")
    a(f"v_and_b32 v{T}, 127, v0")
    a(f"v_lshrrev_b32 v{T+1}, 7, v0")
    a(f"v_lshlrev_b32 v{T+2}, 13, v{T+1}")
    a(f"v_lshl_add_u32 v{T+2}, v{T}, 4, v{T+2}")
    a("s_lshl_b32 s3, s32, 16")
    a("s_add_u32 s62, s3, 4096")
    for j in range(4):
        so = "s3" if j < 2 else "s62"
        a(f"buffer_load_dwordx4 v[{S+4*j}:{S+4*j+3}], v{T+2}, s[24:27], {so} offen offset:{WS_PART1+2048*(j%2)} sc1")
    a("s_waitcnt vmcnt(0)")
    for e in range(4):
        a(f"v_add_f32 v{S+e}, v{S+e}, v{S+4+e}")
        a(f"v_add_f32 v{S+8+e}, v{S+8+e}, v{S+12+e}")
        a(f"v_add_f32 v{S+e}, v{S+e}, v{S+8+e}")
    a(f"v_lshlrev_b32 v{T+1}, 11, v{T+1}")
    a(f"v_lshl_add_u32 v{T+1}, v{T}, 4, v{T+1}")
    a(f"ds_write_b128 v{T+1}, v[{S}:{S+3}] offset:{L_LA}")
    a("s_waitcnt lgkmcnt(0)")
    a("s_barrier")
    a("s_cmp_lg_u32 s34, 0")
    a("s_cbranch_scc1 K1_END")
    a(f"v_lshlrev_b32 v{T}, 5, v{V_LANE}")
    R = 16
    for gq in range(8):
        a(f"ds_read_b128 v[{R+8*gq}:{R+8*gq+3}], v{T} offset:{L_LA+gq*2048}")
        a(f"ds_read_b128 v[{R+8*gq+4}:{R+8*gq+7}], v{T} offset:{L_LA+gq*2048+16}")
    a("s_waitcnt lgkmcnt(0)")
    for st in (4, 2, 1):
        for gq in range(st):
            for j in range(8):
                a(f"v_add_f32 v{R+8*gq+j}, v{R+8*gq+j}, v{R+8*(gq+st)+j}")
    HX = R + 8
    for j in range(8): bf16r(a, R + j, R + j, SM)
    for d in range(4):
        a(f"v_lshlrev_b32 v{HX+2*d}, 16, v{XR+d}")
        a(f"v_and_b32 v{HX+2*d+1}, s{SM}, v{XR+d}")
    for j in range(8): a(f"v_add_f32 v{HX+j}, v{HX+j}, v{R+j}")
    HP = R + 16
    for d in range(4): a(f"v_cvt_pk_bf16_f32 v{HP+d}, v{HX+2*d}, v{HX+2*d+1}")
    for d in range(4):
        a(f"v_lshlrev_b32 v{HX+2*d}, 16, v{HP+d}")
        a(f"v_and_b32 v{HX+2*d+1}, s{SM}, v{HP+d}")
    a(f"v_lshlrev_b32 v{T}, 4, v{V_LANE}")
    a("s_lshl_b32 s3, s32, 10")
    a(f"s_add_u32 s3, s3, {WS_H}")
    a(f"buffer_store_dwordx4 v[{HP}:{HP+3}], v{T}, s[24:27], s3 offen")
    layernorm(a, HX, R + 24, SM, 64)
    a(f"v_lshrrev_b32 v{T}, 1, v{V_LANE}")
    a(f"v_lshlrev_b32 v{T}, 8, v{T}")
    a(f"v_and_b32 v{T+1}, 1, v{V_LANE}")
    a(f"v_lshl_add_u32 v{T}, v{T+1}, 1, v{T}")
    a("s_lshl_b32 s3, s32, 2")
    a(f"s_add_u32 s3, s3, {WS_LN2P}")
    for j in range(8):
        a(f"buffer_store_short_d16_hi v{HX+j}, v{T}, s[24:27], s3 offen offset:{32*j}")
    a("K1_END:")
    a("s_endpgm")
    return lds_total

def gen_k2(a):
    L_RED, L_ACT = 0, 16384
    lds_total = 16384 + 512
    a.raw(f".globl {K2N}\n.p2align 8\n.type {K2N},@function\n{K2N}:")
    a(f"s_cmp_ge_u32 s2, {NW2}")
    a("s_cbranch_scc1 K2_END")
    a("s_load_dwordx4 s[36:39], s[0:1], 48")
    a("s_load_dwordx2 s[40:41], s[0:1], 64")
    a("s_load_dwordx2 s[42:43], s[0:1], 88")
    a("v_and_b32 v1, 63, v0")
    a("v_lshrrev_b32 v2, 6, v0")
    a("v_and_b32 v3, 7, v0")
    a("v_readfirstlane_b32 s34, v2")
    a("v_lshrrev_b32 v4, 3, v1")
    a("s_mov_b32 s35, 0xffff0000")
    SM = 35
    a("s_waitcnt lgkmcnt(0)")
    srd(a, 4, 36, 37, 512 * 2752)
    srd(a, 8, 38, 39, 512 * 2752)
    srd(a, 12, 40, 41, 1376 * 1024)
    srd(a, 16, 42, 43, 0x400000)
    LNP = 16
    G = 32
    U = 36
    WD = 40
    ACC = 72
    T = 104
    a(f"v_lshl_add_u32 v{T}, v2, 4, v4")
    a(f"v_lshlrev_b32 v{T}, 5, v{T}")
    a(f"s_mov_b32 s3, {WS_LN2P}")
    for ip in range(2):
        for hf in range(2):
            a(f"buffer_load_dwordx4 v[{LNP+8*ip+4*hf}:{LNP+8*ip+4*hf+3}], v{T}, s[16:19], s3 offen offset:{256*ip+16*hf}")
    a(f"v_lshl_add_u32 v{T+1}, v2, 5, v4")
    a("s_movk_i32 s3, 2752")
    a(f"v_mul_lo_u32 v{T+1}, v{T+1}, s3")
    a(f"v_lshl_add_u32 v{T+1}, v3, 2, v{T+1}")
    a("s_lshl_b32 s3, s2, 5")
    for i in range(4):
        a(f"buffer_load_dword v{G+i}, v{T+1}, s[4:7], s3 offen")
        a(f"buffer_load_dword v{U+i}, v{T+1}, s[8:11], s3 offen")
        if i < 3: a("s_add_u32 s3, s3, 22016")
    a(f"v_and_b32 v{T+2}, 127, v0")
    a(f"v_lshlrev_b32 v{T+3}, 3, v{T+2}")
    a("s_lshl_b32 s3, s2, 14")
    for f in range(16):
        if f and f % 4 == 0: a("s_add_u32 s3, s3, 4096")
        a(f"buffer_load_dwordx2 v[{WD+2*f}:{WD+2*f+1}], v{T+3}, s[12:15], s3 offen offset:{1024*(f%4)}")
    for j in range(32): a(f"v_mov_b32 v{ACC+j}, 0")
    a("s_mov_b32 s60, 0x05040100")
    a("s_mov_b32 s61, 0x07060302")
    a("s_waitcnt vmcnt(16)")
    P = T + 4
    for ip in range(2):
        a(f"v_perm_b32 v{P}, v{G+2*ip+1}, v{G+2*ip}, s60")
        a(f"v_perm_b32 v{P+1}, v{G+2*ip+1}, v{G+2*ip}, s61")
        a(f"v_perm_b32 v{P+2}, v{U+2*ip+1}, v{U+2*ip}, s60")
        a(f"v_perm_b32 v{P+3}, v{U+2*ip+1}, v{U+2*ip}, s61")
        for b in range(8):
            for m in range(2):
                for c in range(2):
                    r = ACC + m * 16 + b * 2 + c
                    a(f"v_dot2_f32_bf16 v{r}, v{P+2*m+c}, v{LNP+8*ip+b}, v{r}")
    for r in range(16): a(f"v_permlane32_swap_b32 v{ACC+r}, v{ACC+16+r}")
    for r in range(16): a(f"v_add_f32 v{ACC+r}, v{ACC+r}, v{ACC+16+r}")
    for b in range(8): a(f"v_permlane16_swap_b32 v{ACC+2*b}, v{ACC+2*b+1}")
    for b in range(8): a(f"v_add_f32 v{ACC+2*b}, v{ACC+2*b}, v{ACC+2*b+1}")
    X = ACC + 16
    for bp in range(4):
        a(f"v_add_f32_dpp v{X+bp}, v{ACC+4*bp}, v{ACC+4*bp} row_ror:8 row_mask:0xf bank_mask:0x3")
    for bp in range(4):
        a(f"v_add_f32_dpp v{X+bp}, v{ACC+4*bp+2}, v{ACC+4*bp+2} row_ror:8 row_mask:0xf bank_mask:0xc")
    a(f"v_lshrrev_b32 v{T}, 5, v1")
    a(f"v_lshlrev_b32 v{T}, 9, v{T}")
    a(f"v_bfe_u32 v{T+1}, v1, 3, 1")
    a(f"v_lshl_add_u32 v{T}, v{T+1}, 6, v{T}")
    a(f"v_lshl_add_u32 v{T}, v3, 3, v{T}")
    a(f"v_bfe_u32 v{T+1}, v1, 4, 1")
    a(f"v_lshl_add_u32 v{T}, v{T+1}, 2, v{T}")
    a(f"v_lshl_add_u32 v{T}, v2, 10, v{T}")
    for bp in range(4):
        a(f"ds_write_b32 v{T}, v{X+bp} offset:{L_RED+128*bp}")
    a("s_waitcnt lgkmcnt(0)")
    a("s_barrier")
    a("s_cmp_ge_u32 s34, 2")
    a("s_cbranch_scc1 K2_SKIP_ACT")
    a(f"v_lshlrev_b32 v{T}, 2, v0")
    for w in range(16):
        a(f"ds_read2st64_b32 v[{ACC+2*w}:{ACC+2*w+1}], v{T} offset0:{4*w} offset1:{4*w+2}")
    a("s_waitcnt lgkmcnt(0)")
    for st in (8, 4, 2, 1):
        for j in range(st):
            a(f"v_add_f32 v{ACC+2*j}, v{ACC+2*j}, v{ACC+2*(j+st)}")
            a(f"v_add_f32 v{ACC+2*j+1}, v{ACC+2*j+1}, v{ACC+2*(j+st)+1}")
    g, u = ACC, ACC + 1
    bf16r(a, g, g, SM)
    bf16r(a, u, u, SM)
    a(f"v_mul_f32 v{T+1}, 0xbfb8aa3b, v{g}")
    a(f"v_exp_f32 v{T+1}, v{T+1}")
    a(f"v_add_f32 v{T+1}, 1.0, v{T+1}")
    a(f"v_rcp_f32 v{T+2}, v{T+1}")
    a(f"v_mul_f32 v{T+3}, v{g}, v{T+2}")
    a(f"v_fma_f32 v{T+4}, -v{T+3}, v{T+1}, v{g}")
    a(f"v_fma_f32 v{T+4}, v{T+4}, v{T+2}, v{T+3}")
    a(f"v_cmp_u_f32 vcc, v{T+4}, v{T+4}")
    a(f"v_cndmask_b32 v{T+3}, v{T+4}, v{T+3}, vcc")
    bf16r(a, T + 3, T + 3, SM)
    a(f"v_mul_f32 v{T+3}, v{T+3}, v{u}")
    bf16r(a, T + 3, T + 3, SM)
    a(f"ds_write_b32 v{T}, v{T+3} offset:{L_ACT}")
    a("s_waitcnt lgkmcnt(0)")
    a("K2_SKIP_ACT:")
    a("s_barrier")
    a(f"v_lshrrev_b32 v{T}, 7, v0")
    a(f"v_lshlrev_b32 v{T+1}, 6, v{T}")
    AH = ACC; AL = ACC + 16
    for q in range(4):
        a(f"ds_read_b128 v[{AH+4*q}:{AH+4*q+3}], v{T+1} offset:{L_ACT+16*q}")
    O = T + 4
    for j in range(4): a(f"v_mov_b32 v{O+j}, 0")
    a("s_waitcnt vmcnt(0) lgkmcnt(0)")
    for f in range(16): a(f"v_lshrrev_b32 v{AL+f}, 16, v{AH+f}")
    for f in range(16):
        a(f"v_dot2_f32_bf16 v{O}, v{WD+2*f}, v{AL+f}, v{O}")
        a(f"v_dot2_f32_bf16 v{O+1}, v{WD+2*f}, v{AH+f}, v{O+1}")
        a(f"v_dot2_f32_bf16 v{O+2}, v{WD+2*f+1}, v{AL+f}, v{O+2}")
        a(f"v_dot2_f32_bf16 v{O+3}, v{WD+2*f+1}, v{AH+f}, v{O+3}")
    a(f"v_lshlrev_b32 v{T}, 4, v0")
    a("s_lshl_b32 s3, s2, 14")
    a(f"s_add_u32 s3, s3, {WS_PART2}")
    a(f"buffer_store_dwordx4 v[{O}:{O+3}], v{T}, s[16:19], s3 offen")
    a("K2_END:")
    a("s_endpgm")
    return lds_total

def gen_k3(a):
    lds_total = 8192
    a.raw(f".globl {K3N}\n.p2align 8\n.type {K3N},@function\n{K3N}:")
    a("s_cmp_ge_u32 s2, 32")
    a("s_cbranch_scc1 K3_END")
    a("s_load_dwordx2 s[36:37], s[0:1], 72")
    a("s_load_dwordx2 s[38:39], s[0:1], 88")
    a("v_and_b32 v1, 31, v0")
    a("v_lshrrev_b32 v2, 5, v0")
    a("s_mov_b32 s35, 0xffff0000")
    SM = 35
    a("s_waitcnt lgkmcnt(0)")
    srd(a, 4, 36, 37, 8192)
    srd(a, 8, 38, 39, 0x400000)
    a(f"s_add_u32 s40, s38, {WS_PART2}\ns_addc_u32 s41, s39, 0")
    srd(a, 12, 40, 41, NW2 * 16384)
    a("v_lshlrev_b32 v3, 14, v2")
    a("v_lshl_add_u32 v3, v1, 4, v3")
    a("s_lshl_b32 s3, s2, 9")
    for j in range(6):
        a(f"buffer_load_dwordx4 v[{8+4*j}:{11+4*j}], v3, s[12:15], s3 offen")
        if j < 5: a("s_add_u32 s3, s3, 262144")
    a("v_lshlrev_b32 v5, 2, v0")
    a("s_lshl_b32 s3, s2, 8")
    a(f"s_add_u32 s42, s3, {WS_H}")
    a("buffer_load_dword v6, v5, s[8:11], s42 offen")
    a("s_waitcnt vmcnt(1)")
    for e in range(4):
        a(f"v_add_f32 v{8+e}, v{8+e}, v{12+e}")
        a(f"v_add_f32 v{16+e}, v{16+e}, v{20+e}")
        a(f"v_add_f32 v{24+e}, v{24+e}, v{28+e}")
        a(f"v_add_f32 v{8+e}, v{8+e}, v{16+e}")
        a(f"v_add_f32 v{8+e}, v{8+e}, v{24+e}")
    a("v_lshlrev_b32 v4, 4, v0")
    a("ds_write_b128 v4, v[8:11]")
    a("s_waitcnt lgkmcnt(0)")
    a("s_barrier")
    a("v_readfirstlane_b32 s34, v0")
    a("s_cmp_ge_u32 s34, 64")
    a("s_cbranch_scc1 K3_END")
    a("v_lshlrev_b32 v4, 3, v0")
    for p in range(16):
        a(f"ds_read_b64 v[{8+2*p}:{9+2*p}], v4 offset:{512*p}")
    a("s_waitcnt vmcnt(0) lgkmcnt(0)")
    for st in (8, 4, 2, 1):
        for j in range(st):
            a(f"v_add_f32 v{8+2*j}, v{8+2*j}, v{8+2*(j+st)}")
            a(f"v_add_f32 v{9+2*j}, v{9+2*j}, v{9+2*(j+st)}")
    bf16r(a, 8, 8, SM)
    bf16r(a, 9, 9, SM)
    a("v_lshlrev_b32 v10, 16, v6")
    a(f"v_and_b32 v11, s{SM}, v6")
    a("v_add_f32 v8, v8, v10")
    a("v_add_f32 v9, v9, v11")
    a("v_cvt_pk_bf16_f32 v8, v8, v9")
    a("buffer_store_dword v8, v5, s[4:7], s3 offen")
    a("K3_END:")
    a("s_endpgm")
    return lds_total

def main(out):
    a = Asm()
    l1 = gen_k1(a)
    l2 = gen_k2(a)
    l3 = gen_k3(a)
    body = a.finish()
    txt = HEADER
    txt += f"; @launch kernel={NAME} grid=(256,1,1) block=(1024,1,1) lds={l1}\n"
    txt += f"; @launch kernel={K2N} grid=({NW2},1,1) block=(1024,1,1) lds={l2}\n"
    txt += f"; @launch kernel={K3N} grid=(32,1,1) block=(512,1,1) lds={l3}\n"
    txt += '.amdgcn_target "amdgcn-amd-amdhsa--gfx950"\n.text\n'
    txt += body
    txt += '.section .rodata,"a"\n'
    txt += kd(NAME, 128) + kd(K2N, 116) + kd(K3N, 48)
    open(out, "w").write(txt)

if __name__ == "__main__":
    main(sys.argv[1] if len(sys.argv) > 1 else "sequential_preLN__mha_block_cached__swiglu_ffn__decode.s")
```

```python
import sys
from asmlib import Asm

NAME = "sequential_preLN__mha_block_cached__swiglu_ffn__decode_kernel"
K2N = "ffn_mid_kernel"
K3N = "ffn_out_kernel"

WS_PART1 = 0x0
WS_H     = 0x80000
WS_LN2P  = 0x82000
WS_PART2 = 0x100000
NW2 = 86
WS_GP    = 0x280000
WS_GPSZ  = 86 * 16384
WS_SIZE  = 0x800000

HEADER = open("sequential_preLN__mha_block_cached__swiglu_ffn__decode.s.ref").read().split("; Override launch")[0]

STAMPS = False
WS_TS = 0x600000
def stamp(a, idx):
    if not STAMPS: return
    a("s_memrealtime s[90:91]")
    a("s_waitcnt lgkmcnt(0)")
    a(f"s_mov_b32 s{80+idx}, s90")

def stamp_init(a):
    if not STAMPS: return
    for i in range(8): a(f"s_mov_b32 s{80+i}, 0")

def stamp_flush(a, kid, srd_ws, vt, wave_sreg=34):
    if not STAMPS: return
    stamp(a, 7)
    lab = f"STF_{kid}"
    a(f"s_cmp_lg_u32 s{wave_sreg}, 0")
    a(f"s_cbranch_scc1 {lab}")
    a("s_lshl_b32 s90, s2, 5")
    a(f"s_add_u32 s90, s90, {WS_TS + kid*65536}")
    a("s_mov_b64 exec, 1")
    a(f"v_mov_b32 v{vt+1}, 0")
    for i in range(8):
        a(f"v_mov_b32 v{vt}, s{80+i}")
        a(f"buffer_store_dword v{vt}, v{vt+1}, s[{srd_ws}:{srd_ws+3}], s90 offen offset:{4*i}")
    a(f"{lab}:")

class VM:
    def __init__(self, a): self.q = []; self.a = a
    def issue(self, tag, n=1): self.q += [tag] * n
    def wait(self, tag):
        idx = max(i for i, t in enumerate(self.q) if t == tag)
        n = len(self.q) - 1 - idx
        self.a(f"s_waitcnt vmcnt({n})")
        self.q = self.q[idx + 1:]
    def drain(self):
        self.a("s_waitcnt vmcnt(0)"); self.q = []

def srd(a, d, lo, hi, size):
    a(f"s_mov_b32 s{d}, s{lo}")
    a(f"s_and_b32 s{d+1}, s{hi}, 0xffff")
    a(f"s_mov_b32 s{d+2}, {size}")
    a(f"s_mov_b32 s{d+3}, 0x00020000")

def row_reduce(a, op, src, t0, t1):
    a(f"{op}_dpp v{t0}, v{src}, v{src} quad_perm:[1,0,3,2] row_mask:0xf bank_mask:0xf")
    a(f"{op}_dpp v{t1}, v{t0}, v{t0} quad_perm:[2,3,0,1] row_mask:0xf bank_mask:0xf")
    a(f"{op}_dpp v{t0}, v{t1}, v{t1} row_half_mirror row_mask:0xf bank_mask:0xf")
    a(f"{op}_dpp v{t1}, v{t0}, v{t0} row_mirror row_mask:0xf bank_mask:0xf")

def wave_reduce(a, op, src, dst, t0, t1, sb):
    row_reduce(a, op, src, t0, t1)
    for i in range(4):
        a(f"v_readlane_b32 s{sb+i}, v{t1}, {16*i}")
    a(f"v_mov_b32 v{dst}, s{sb}")
    for i in range(1, 4):
        a(f"{op} v{dst}, s{sb+i}, v{dst}")

def bf16r(a, dst, src, smask):
    a(f"v_cvt_pk_bf16_f32 v{dst}, v{src}, v{src}")
    a(f"v_and_b32 v{dst}, s{smask}, v{dst}")

def layernorm(a, X, T, smask, sb):
    s0, s1, t0, t1, mean, mbf, sd, rs = T, T+1, T+2, T+3, T+4, T+5, T+6, T+7
    D = T + 8
    a(f"v_add_f32 v{s0}, v{X}, v{X+1}")
    a(f"v_add_f32 v{s1}, v{X+2}, v{X+3}")
    a(f"v_add_f32 v{s0}, v{s0}, v{X+4}")
    a(f"v_add_f32 v{s1}, v{s1}, v{X+5}")
    a(f"v_add_f32 v{s0}, v{s0}, v{X+6}")
    a(f"v_add_f32 v{s1}, v{s1}, v{X+7}")
    a(f"v_add_f32 v{s0}, v{s0}, v{s1}")
    wave_reduce(a, "v_add_f32", s0, mean, t0, t1, sb)
    a(f"v_mul_f32 v{mean}, 0x3b000000, v{mean}")
    a(f"v_mov_b32 v{s0}, 0")
    a(f"v_mov_b32 v{s1}, 0")
    for j in range(0, 8, 2):
        a(f"v_sub_f32 v{D}, v{X+j}, v{mean}")
        a(f"v_sub_f32 v{D+1}, v{X+j+1}, v{mean}")
        a(f"v_fmac_f32 v{s0}, v{D}, v{D}")
        a(f"v_fmac_f32 v{s1}, v{D+1}, v{D+1}")
    a(f"v_add_f32 v{s0}, v{s0}, v{s1}")
    wave_reduce(a, "v_add_f32", s0, sd, t0, t1, sb)
    a(f"v_mul_f32 v{sd}, 0x3b000000, v{sd}")
    bf16r(a, sd, sd, smask)
    a(f"v_add_f32 v{sd}, 0x3727c5ac, v{sd}")
    bf16r(a, sd, sd, smask)
    a(f"v_sqrt_f32 v{sd}, v{sd}")
    bf16r(a, sd, sd, smask)
    bf16r(a, mbf, mean, smask)
    a(f"v_rcp_f32 v{rs}, v{sd}")
    for j in range(8):
        a(f"v_sub_f32 v{D}, v{X+j}, v{mbf}")
        bf16r(a, D, D, smask)
        a(f"v_mul_f32 v{D+1}, v{D}, v{rs}")
        a(f"v_fma_f32 v{D+2}, -v{D+1}, v{sd}, v{D}")
        a(f"v_fma_f32 v{D+1}, v{D+2}, v{rs}, v{D+1}")
        bf16r(a, X+j, D+1, smask)

def kd(name, vgpr, sgpr=96):
    acc = (vgpr + 3) // 4 * 4
    return f""".p2align 6
.amdhsa_kernel {name}
  .amdhsa_next_free_vgpr {vgpr}
  .amdhsa_next_free_sgpr {sgpr}
  .amdhsa_accum_offset {acc}
  .amdhsa_group_segment_fixed_size 0
  .amdhsa_kernarg_size 96
  .amdhsa_user_sgpr_count 2
  .amdhsa_user_sgpr_kernarg_segment_ptr 1
  .amdhsa_system_sgpr_workgroup_id_x 1
  .amdhsa_float_denorm_mode_32 3
.end_amdhsa_kernel
"""

def gen_k1(a):
    L_LN, L_SC, L_WO = 0, 0, 0
    L_QP, L_LA = 32768, 32768
    L_RED, L_OP, L_FLAG, L_CTR = 40960, 41216, 49408, 49412
    lds_total = 49664
    NS = 3
    a.raw(f".globl {NAME}\n.p2align 8\n.type {NAME},@function\n{NAME}:")
    a("s_cmp_ge_u32 s2, 256")
    a("s_cbranch_scc1 K1_END")
    a("s_load_dwordx16 s[36:51], s[0:1], 0")
    a("s_load_dwordx8 s[52:59], s[0:1], 64")
    stamp_init(a); stamp(a, 0)
    V_LANE, V_C, V_R, V_KV = 1, 2, 3, 4
    Q = 5
    MX = 9
    XR = 10
    VPA, VSC = 14, 15
    W = 16
    KB = 48
    ACC = 96
    T = 104
    SID = 70
    a(f"v_and_b32 v{V_LANE}, 63, v0")
    a(f"v_lshrrev_b32 v{T}, 6, v0")
    a(f"v_and_b32 v{V_C}, 15, v0")
    a(f"v_readfirstlane_b32 s34, v{T}")
    a(f"v_lshrrev_b32 v{V_R}, 4, v{V_LANE}")
    a(f"v_lshlrev_b32 v{V_KV}, 4, v{V_LANE}")
    a("s_lshr_b32 s32, s2, 5")
    a("s_and_b32 s33, s2, 31")
    a("s_mov_b32 s35, 0xffff0000")
    SM = 35
    a("s_waitcnt lgkmcnt(0)")
    srd(a, 4, 36, 37, 8192)
    a("s_lshl_b32 s3, s2, 20")
    a("s_lshr_b32 s60, s2, 12")
    a("s_add_u32 s38, s38, s3\ns_addc_u32 s39, s39, s60")
    a("s_add_u32 s40, s40, s3\ns_addc_u32 s41, s41, s60")
    srd(a, 8, 38, 39, 0x100000)
    srd(a, 12, 40, 41, 0x100000)
    srd(a, 16, 42, 43, 0x400000)
    srd(a, 20, 44, 45, 0x400000)
    srd(a, 24, 58, 59, WS_SIZE)
    srd(a, 28, 56, 57, 256)
    a("s_bitcmp1_b32 s2, 0")
    a("s_cselect_b32 s48, s50, s48")
    a("s_cselect_b32 s49, s51, s49")
    srd(a, 36, 48, 49, 512 * 2752)
    a("s_mov_b32 s42, 0x100000")
    a("s_mov_b32 s43, 0x00020000")
    a("s_lshl_b32 s3, s32, 10")
    a(f"buffer_load_dwordx4 v[{XR}:{XR+3}], v{V_KV}, s[4:7], s3 offen")
    a("s_lshl_b32 s3, s34, 5")
    a(f"v_add_u32 v{T+1}, s3, v{V_R}")
    a(f"v_lshlrev_b32 v{T+1}, 13, v{T+1}")
    a(f"v_lshl_add_u32 v{T+1}, v{V_C}, 4, v{T+1}")
    a("s_lshl_b32 s3, s33, 8")
    for i in range(8):
        a(f"buffer_load_dwordx4 v[{W+4*i}:{W+4*i+3}], v{T+1}, s[16:19], s3 offen")
        if i < 7: a("s_add_u32 s3, s3, 32768")
    a("s_barrier")
    for s in range(NS):
        a(f"s_add_u32 s{SID+s}, s34, {16*s}")
        a(f"s_lshl_b32 s61, s{SID+s}, 12")
        for k in range(4):
            a(f"buffer_load_dwordx4 v[{KB+16*s+4*k}:{KB+16*s+4*k+3}], v{V_KV}, s[8:11], s61 offen offset:{1024*k} nt")
    a("s_waitcnt vmcnt(20)")
    X = T
    for d in range(4):
        a(f"v_lshlrev_b32 v{X+2*d}, 16, v{XR+d}")
        a(f"v_and_b32 v{X+2*d+1}, s{SM}, v{XR+d}")
    layernorm(a, X, T + 8, SM, 64)
    a("s_lshl_b32 s3, s34, 11")
    a(f"v_lshl_add_u32 v{T+8}, v{V_LANE}, 5, s3")
    a(f"ds_write_b128 v{T+8}, v[{X}:{X+3}] offset:{L_LN}")
    a(f"ds_write_b128 v{T+8}, v[{X+4}:{X+7}] offset:{L_LN+16}")
    a("s_lshl_b32 s62, s34, 7")
    a("s_add_u32 s3, s3, s62")
    a(f"v_lshl_add_u32 v{T+8}, v{V_R}, 2, s3")
    a("s_waitcnt lgkmcnt(0)")
    LNV = T
    for i in range(8):
        a(f"ds_read_b32 v{LNV+i}, v{T+8} offset:{L_LN+16*i}")
    a(f"v_mov_b32 v{T+9}, 48")
    a(f"v_mov_b32 v{T+10}, 0")
    a(f"ds_write_b32 v{T+10}, v{T+9} offset:{L_CTR}")
    a("s_waitcnt vmcnt(12) lgkmcnt(0)")
    QA = ACC
    for j in range(8): a(f"v_mov_b32 v{QA+j}, 0")
    for i in range(8):
        a(f"v_lshrrev_b32 v{T+8+(i%2)}, 16, v{LNV+i}")
        for d in range(4):
            a(f"v_dot2_f32_bf16 v{QA+2*d}, v{W+4*i+d}, v{T+8+(i%2)}, v{QA+2*d}")
            a(f"v_dot2_f32_bf16 v{QA+2*d+1}, v{W+4*i+d}, v{LNV+i}, v{QA+2*d+1}")
    a("s_lshl_b32 s3, s33, 7")
    a("s_lshl_b32 s62, s34, 3")
    a("s_add_u32 s3, s3, s62")
    a("s_lshl_b32 s3, s3, 10")
    for i in range(8):
        if i == 4: a("s_add_u32 s3, s3, 4096")
        a(f"buffer_load_dwordx4 v[{W+4*i}:{W+4*i+3}], v{V_KV}, s[20:23], s3 offen offset:{1024*(i%4)}")
    def rows_reduce8(A8):
        for p in range(4):
            a(f"v_permlane32_swap_b32 v{A8+2*p}, v{A8+2*p+1}")
        for p in range(4):
            a(f"v_add_f32 v{A8+2*p}, v{A8+2*p}, v{A8+2*p+1}")
        a(f"v_permlane16_swap_b32 v{A8}, v{A8+2}")
        a(f"v_permlane16_swap_b32 v{A8+4}, v{A8+6}")
        a(f"v_add_f32 v{A8}, v{A8}, v{A8+2}")
        a(f"v_add_f32 v{A8+4}, v{A8+4}, v{A8+6}")
    rows_reduce8(QA)
    a(f"v_and_b32 v{T}, 1, v{V_R}")
    a(f"v_lshlrev_b32 v{T}, 3, v{T}")
    a(f"v_lshrrev_b32 v{T+1}, 1, v{V_R}")
    a(f"v_lshl_add_u32 v{T}, v{T+1}, 2, v{T}")
    a(f"v_lshl_add_u32 v{T}, v{V_C}, 5, v{T}")
    a("s_lshl_b32 s3, s34, 9")
    a(f"v_add_u32 v{VPA}, s3, v{T}")
    a(f"v_lshrrev_b32 v{VSC}, 2, v{V_LANE}")
    a(f"v_lshlrev_b32 v{VSC}, 2, v{VSC}")
    a(f"ds_write_b32 v{VPA}, v{QA} offset:{L_QP}")
    a(f"ds_write_b32 v{VPA}, v{QA+4} offset:{L_QP+16}")
    a("s_waitcnt lgkmcnt(0)")
    a("s_barrier")
    a(f"v_lshlrev_b32 v{T+16}, 3, v{V_LANE}")
    for half in range(2):
        for w in range(8):
            a(f"ds_read_b64 v[{T+2*w}:{T+2*w+1}], v{T+16} offset:{L_QP+(half*8+w)*512}")
        a("s_waitcnt lgkmcnt(0)")
        for e in range(2):
            a(f"v_add_f32 v{T+e}, v{T+e}, v{T+2+e}")
            a(f"v_add_f32 v{T+4+e}, v{T+4+e}, v{T+6+e}")
            a(f"v_add_f32 v{T+8+e}, v{T+8+e}, v{T+10+e}")
            a(f"v_add_f32 v{T+12+e}, v{T+12+e}, v{T+14+e}")
            a(f"v_add_f32 v{T+e}, v{T+e}, v{T+4+e}")
            a(f"v_add_f32 v{T+8+e}, v{T+8+e}, v{T+12+e}")
            if half == 0:
                a(f"v_add_f32 v{ACC+e}, v{T+e}, v{T+8+e}")
            else:
                a(f"v_add_f32 v{T+e}, v{T+e}, v{T+8+e}")
                a(f"v_add_f32 v{ACC+e}, v{ACC+e}, v{T+e}")
    a(f"v_cvt_pk_bf16_f32 v{ACC}, v{ACC}, v{ACC+1}")
    a(f"v_lshlrev_b32 v{T}, 4, v{V_C}")
    for k in range(4):
        a(f"v_add_u32 v{T+1+k}, {4*k}, v{T}")
    for k in range(4):
        a(f"ds_bpermute_b32 v{Q+k}, v{T+1+k}, v{ACC}")
    a("s_waitcnt lgkmcnt(0)")
    stamp(a, 1)
    a(f"v_mov_b32 v{MX}, 0xff800000")
    a("s_mov_b32 s63, 0x3db504f3")
    V_ONE, V_CTRA, V_ID = T + 20, T + 21, T + 22
    a(f"v_mov_b32 v{V_ONE}, 1")
    a(f"v_mov_b32 v{V_CTRA}, {L_CTR}")
    def req_id():
        a("s_mov_b64 exec, 1")
        a(f"ds_add_rtn_u32 v{V_ID}, v{V_CTRA}, v{V_ONE}")
        a("s_mov_b64 exec, -1")
    def issue_next(s):
        a("s_cmp_lt_u32 s74, 256")
        a("s_cselect_b32 s40, s8, s12")
        a("s_cselect_b32 s41, s9, s13")
        a("s_cselect_b32 s61, 0, 256")
        a("s_sub_u32 s61, s74, s61")
        a("s_lshl_b32 s61, s61, 12")
        for k in range(4):
            a(f"buffer_load_dwordx4 v[{KB+16*s+4*k}:{KB+16*s+4*k+3}], v{V_KV}, s[40:43], s61 offen offset:{1024*k} nt")
    A0, B0, C0 = T, T + 4, T + 6
    for s in range(NS):
        a(f"K1_K{s}:")
        a(f"s_cmp_ge_u32 s{SID+s}, 256")
        a(f"s_cbranch_scc0 K1_KB{s}")
        a(f"s_mov_b32 s73, {s}")
        a("s_branch K1_SOFTMAX")
        a(f"K1_KB{s}:")
        req_id()
        a("s_waitcnt vmcnt(8)")
        base = KB + 16 * s
        for d in range(4):
            for k in range(4):
                c = "0" if d == 0 else f"v{A0+k}"
                a(f"v_dot2_f32_bf16 v{A0+k}, v{base+4*k+d}, v{Q+d}, {c}")
        a("s_waitcnt lgkmcnt(0)")
        a(f"v_readfirstlane_b32 s74, v{V_ID}")
        issue_next(s)
        a(f"v_add_f32_dpp v{B0}, v{A0}, v{A0} row_ror:8 row_mask:0xf bank_mask:0x3")
        a(f"v_add_f32_dpp v{B0+1}, v{A0+2}, v{A0+2} row_ror:8 row_mask:0xf bank_mask:0x3")
        a(f"v_add_f32_dpp v{B0}, v{A0+1}, v{A0+1} row_ror:8 row_mask:0xf bank_mask:0xc")
        a(f"v_add_f32_dpp v{B0+1}, v{A0+3}, v{A0+3} row_ror:8 row_mask:0xf bank_mask:0xc")
        a(f"v_add_f32_dpp v{C0}, v{B0}, v{B0} row_half_mirror row_mask:0xf bank_mask:0x5")
        a(f"v_add_f32_dpp v{C0}, v{B0+1}, v{B0+1} row_half_mirror row_mask:0xf bank_mask:0xa")
        a(f"v_add_f32_dpp v{C0+1}, v{C0}, v{C0} quad_perm:[1,0,3,2] row_mask:0xf bank_mask:0xf")
        a(f"v_add_f32_dpp v{C0}, v{C0+1}, v{C0+1} quad_perm:[2,3,0,1] row_mask:0xf bank_mask:0xf")
        a(f"s_lshl_b32 s3, s{SID+s}, 6")
        a(f"v_add_u32 v{C0+1}, s3, v{VSC}")
        bf16r(a, C0, C0, SM)
        a(f"v_mul_f32 v{C0}, s63, v{C0}")
        bf16r(a, C0, C0, SM)
        a(f"ds_write_b32 v{C0+1}, v{C0} offset:{L_SC}")
        a(f"v_max_f32 v{MX}, v{MX}, v{C0}")
        a(f"s_mov_b32 s{SID+s}, s74")
        if s == NS - 1: a("s_branch K1_K0")
    a("K1_SOFTMAX:")
    stamp(a, 2)
    RP = T + 12
    a(f"v_cmp_gt_u32 vcc, 688, v0")
    a("s_and_saveexec_b64 s[66:67], vcc")
    a("s_cbranch_execz K1_RP1")
    a("s_lshr_b32 s3, s2, 4")
    a("s_lshl_b32 s3, s3, 5")
    a("s_bfe_u32 s62, s2, 0x30001")
    a("s_add_u32 s3, s3, s62")
    a("s_mul_i32 s3, s3, 2752")
    a(f"v_lshlrev_b32 v{T+16}, 2, v0")
    for ii in range(4):
        a(f"buffer_load_dword v{RP+ii}, v{T+16}, s[36:39], s3 offen")
        if ii < 3: a("s_add_u32 s3, s3, 22016")
    a("K1_RP1:")
    a("s_mov_b64 exec, s[66:67]")
    LOG2E = "0x3fb8aa3b"
    GM, GS, RS = T + 8, T + 9, T + 10
    wave_reduce(a, "v_max_f32", MX, T + 2, T, T + 1, 64)
    a("s_lshl_b32 s3, s34, 2")
    a(f"v_mov_b32 v{T}, s3")
    a(f"ds_write_b32 v{T}, v{T+2} offset:{L_RED}")
    a("s_waitcnt lgkmcnt(0)")
    a("s_barrier")
    a(f"v_lshlrev_b32 v{T+11}, 2, v{V_C}")
    a(f"v_lshlrev_b32 v{T+3}, 4, v0")
    a(f"ds_read_b32 v{T+2}, v{T+11} offset:{L_RED}")
    a(f"ds_read_b128 v[{T+4}:{T+7}], v{T+3} offset:{L_SC}")
    a(f"s_mov_b32 s63, {LOG2E}")
    a("s_waitcnt lgkmcnt(1)")
    row_reduce(a, "v_max_f32", T + 2, T, GM)
    a("s_waitcnt lgkmcnt(0)")
    for e in range(4):
        a(f"v_sub_f32 v{T+4+e}, v{T+4+e}, v{GM}")
    for e in range(4):
        a(f"v_mul_f32 v{T+4+e}, s63, v{T+4+e}")
    for e in range(4):
        a(f"v_exp_f32 v{T+4+e}, v{T+4+e}")
    a(f"v_add_f32 v{T+4}, v{T+4}, v{T+5}")
    a(f"v_add_f32 v{T+6}, v{T+6}, v{T+7}")
    a(f"v_add_f32 v{T+4}, v{T+4}, v{T+6}")
    wave_reduce(a, "v_add_f32", T + 4, T + 2, T, T + 1, 64)
    a(f"v_mov_b32 v{T}, s3")
    a(f"ds_write_b32 v{T}, v{T+2} offset:{L_RED+64}")
    a("s_waitcnt lgkmcnt(0)")
    a("s_barrier")
    a(f"ds_read_b32 v{T+2}, v{T+11} offset:{L_RED+64}")
    a("s_waitcnt lgkmcnt(0)")
    row_reduce(a, "v_add_f32", T + 2, T, GS)
    a(f"v_rcp_f32 v{RS}, v{GS}")
    for j in range(8): a(f"v_mov_b32 v{ACC+j}, 0")
    a(f"v_cmp_gt_u32 vcc, 688, v0")
    a("s_and_saveexec_b64 s[66:67], vcc")
    a("s_cbranch_execz K1_RP2")
    a(f"v_lshrrev_b32 v{T+16}, 3, v0")
    a(f"v_lshlrev_b32 v{T+16}, 14, v{T+16}")
    a(f"v_and_b32 v{T+17}, 7, v0")
    a(f"v_lshl_add_u32 v{T+16}, v{T+17}, 4, v{T+16}")
    a("s_lshr_b32 s3, s2, 4")
    a("s_lshl_b32 s3, s3, 10")
    a("s_bfe_u32 s62, s2, 0x30001")
    a("s_lshl_b32 s62, s62, 7")
    a("s_add_u32 s3, s3, s62")
    a("s_bitcmp1_b32 s2, 0")
    a(f"s_cselect_b32 s62, {WS_GPSZ}, 0")
    a("s_add_u32 s3, s3, s62")
    a(f"s_add_u32 s3, s3, {WS_GP}")
    a("s_waitcnt vmcnt(0)")
    a(f"buffer_store_dwordx4 v[{RP}:{RP+3}], v{T+16}, s[24:27], s3 offen")
    a("K1_RP2:")
    a("s_mov_b64 exec, s[66:67]")
    stamp(a, 3)
    a("s_cmp_eq_u32 s73, 1")
    a("s_cbranch_scc1 K1_V1")
    a("s_cmp_eq_u32 s73, 2")
    a("s_cbranch_scc1 K1_V2")
    BANK = [0, 2, 1, 3]
    for s in range(NS):
        a(f"K1_V{s}:")
        a(f"s_cmp_ge_u32 s{SID+s}, 512")
        a("s_cbranch_scc1 K1_VDONE")
        req_id()
        a(f"s_lshl_b32 s3, s{SID+s}, 6")
        a("s_sub_u32 s3, s3, 16384")
        a(f"v_add_u32 v{T+1}, s3, v{VSC}")
        a(f"ds_read_b32 v{T}, v{T+1} offset:{L_SC}")
        a("s_waitcnt lgkmcnt(0)")
        a(f"v_readfirstlane_b32 s74, v{V_ID}")
        PH, PL = T + 5, T + 6
        a(f"v_sub_f32 v{T}, v{T}, v{GM}")
        a(f"v_mul_f32 v{T}, s63, v{T}")
        a(f"v_exp_f32 v{T}, v{T}")
        a(f"v_mul_f32 v{T+1}, v{T}, v{RS}")
        a(f"v_fma_f32 v{T+2}, -v{T+1}, v{GS}, v{T}")
        a(f"v_fma_f32 v{T+1}, v{T+2}, v{RS}, v{T+1}")
        bf16r(a, PH, T + 1, SM)
        a(f"v_lshrrev_b32 v{PL}, 16, v{PH}")
        a("s_waitcnt vmcnt(8)")
        base = KB + 16 * s
        for k in range(4):
            bc = 4 * BANK[k]
            for d in range(4):
                a(f"v_dot2c_f32_bf16_dpp v{ACC+2*d}, v{PL}, v{base+4*k+d} row_newbcast:{bc} row_mask:0xf bank_mask:0xf")
                a(f"v_dot2c_f32_bf16_dpp v{ACC+2*d+1}, v{PH}, v{base+4*k+d} row_newbcast:{bc} row_mask:0xf bank_mask:0xf")
        issue_next(s)
        a(f"s_mov_b32 s{SID+s}, s74")
        if s == NS - 1: a("s_branch K1_V0")
    a("K1_VDONE:")
    a("s_nop 4")
    stamp(a, 4)
    S = KB
    rows_reduce8(ACC)
    a(f"ds_write_b32 v{VPA}, v{ACC} offset:{L_OP}")
    a(f"ds_write_b32 v{VPA}, v{ACC+4} offset:{L_OP+16}")
    a("s_waitcnt vmcnt(0) lgkmcnt(0)")
    a("s_barrier")
    a(f"v_and_b32 v{T}, 7, v{V_LANE}")
    a("s_lshl_b32 s3, s34, 5")
    a(f"v_lshl_add_u32 v{T}, v{T}, 2, s3")
    for w in range(16):
        a(f"ds_read_b32 v{S+w}, v{T} offset:{L_OP+w*512}")
    a("s_waitcnt lgkmcnt(0)")
    for st in (8, 4, 2, 1):
        for j in range(st):
            a(f"v_add_f32 v{S+j}, v{S+j}, v{S+j+st}")
    bf16r(a, S, S, SM)
    for i in range(8):
        a(f"v_readlane_b32 s{64+i}, v{S}, {i}")
    for i in range(8):
        a(f"s_lshr_b32 s{72+i}, s{64+i}, 16")
    for j in range(8): a(f"v_mov_b32 v{ACC+j}, 0")
    for i in range(8):
        for d in range(4):
            a(f"v_dot2_f32_bf16 v{ACC+2*d}, v{W+4*i+d}, s{72+i}, v{ACC+2*d}")
            a(f"v_dot2_f32_bf16 v{ACC+2*d+1}, v{W+4*i+d}, s{64+i}, v{ACC+2*d+1}")
    a("s_lshl_b32 s3, s34, 11")
    a(f"v_lshl_add_u32 v{T}, v{V_LANE}, 5, s3")
    a(f"ds_write_b128 v{T}, v[{ACC}:{ACC+3}] offset:{L_WO}")
    a(f"ds_write_b128 v{T}, v[{ACC+4}:{ACC+7}] offset:{L_WO+16}")
    a("s_waitcnt lgkmcnt(0)")
    a("s_barrier")
    a("s_cmp_ge_u32 s34, 8")
    a("s_cbranch_scc1 K1_SKIP_PART")
    a(f"v_lshlrev_b32 v{T}, 2, v0")
    for w in range(16):
        a(f"ds_read_b32 v{S+w}, v{T} offset:{L_WO+w*2048}")
    a("s_waitcnt lgkmcnt(0)")
    for st in (8, 4, 2, 1):
        for j in range(st):
            a(f"v_add_f32 v{S+j}, v{S+j}, v{S+j+st}")
    a("s_lshl_b32 s3, s2, 11")
    a(f"buffer_store_dword v{S}, v{T}, s[24:27], s3 offen offset:{WS_PART1} sc1")
    a("s_waitcnt vmcnt(0)")
    a("K1_SKIP_PART:")
    a("s_barrier")
    stamp(a, 5)
    a("s_cmp_lg_u32 s34, 0")
    a("s_cbranch_scc1 K1_SKIP_ATOM")
    a(f"v_cmp_eq_u32 vcc, 0, v0")
    a("s_and_saveexec_b64 s[66:67], vcc")
    a(f"v_mov_b32 v{T}, 1")
    a("s_lshl_b32 s3, s32, 2")
    a(f"v_mov_b32 v{T+1}, s3")
    a(f"buffer_atomic_add v{T}, v{T+1}, s[28:31], 0 offen sc0")
    a("s_waitcnt vmcnt(0)")
    a(f"v_mov_b32 v{T+1}, 0")
    a(f"ds_write_b32 v{T+1}, v{T} offset:{L_FLAG}")
    a("s_waitcnt lgkmcnt(0)")
    a("s_mov_b64 exec, s[66:67]")
    a("K1_SKIP_ATOM:")
    a("s_barrier")
    a(f"v_mov_b32 v{T+1}, 0")
    a(f"ds_read_b32 v{T}, v{T+1} offset:{L_FLAG}")
    a("s_waitcnt lgkmcnt(0)")
    a(f"v_readfirstlane_b32 s3, v{T}")
    a("s_cmp_lg_u32 s3, 31")
    a("s_cbranch_scc1 K1_END2")
    stamp(a, 6)
    a(f"v_and_b32 v{T}, 127, v0")
    a(f"v_lshrrev_b32 v{T+1}, 7, v0")
    a(f"v_lshlrev_b32 v{T+2}, 13, v{T+1}")
    a(f"v_lshl_add_u32 v{T+2}, v{T}, 4, v{T+2}")
    a("s_lshl_b32 s3, s32, 16")
    a("s_add_u32 s62, s3, 4096")
    for j in range(4):
        so = "s3" if j < 2 else "s62"
        a(f"buffer_load_dwordx4 v[{S+4*j}:{S+4*j+3}], v{T+2}, s[24:27], {so} offen offset:{WS_PART1+2048*(j%2)} sc1")
    a("s_waitcnt vmcnt(0)")
    for e in range(4):
        a(f"v_add_f32 v{S+e}, v{S+e}, v{S+4+e}")
        a(f"v_add_f32 v{S+8+e}, v{S+8+e}, v{S+12+e}")
        a(f"v_add_f32 v{S+e}, v{S+e}, v{S+8+e}")
    a(f"v_lshlrev_b32 v{T+1}, 11, v{T+1}")
    a(f"v_lshl_add_u32 v{T+1}, v{T}, 4, v{T+1}")
    a(f"ds_write_b128 v{T+1}, v[{S}:{S+3}] offset:{L_LA}")
    a("s_waitcnt lgkmcnt(0)")
    a("s_barrier")
    a("s_cmp_lg_u32 s34, 0")
    a("s_cbranch_scc1 K1_END")
    a(f"v_lshlrev_b32 v{T}, 5, v{V_LANE}")
    R = 16
    for gq in range(8):
        a(f"ds_read_b128 v[{R+8*gq}:{R+8*gq+3}], v{T} offset:{L_LA+gq*2048}")
        a(f"ds_read_b128 v[{R+8*gq+4}:{R+8*gq+7}], v{T} offset:{L_LA+gq*2048+16}")
    a("s_waitcnt lgkmcnt(0)")
    for st in (4, 2, 1):
        for gq in range(st):
            for j in range(8):
                a(f"v_add_f32 v{R+8*gq+j}, v{R+8*gq+j}, v{R+8*(gq+st)+j}")
    HX = R + 8
    for j in range(8): bf16r(a, R + j, R + j, SM)
    for d in range(4):
        a(f"v_lshlrev_b32 v{HX+2*d}, 16, v{XR+d}")
        a(f"v_and_b32 v{HX+2*d+1}, s{SM}, v{XR+d}")
    for j in range(8): a(f"v_add_f32 v{HX+j}, v{HX+j}, v{R+j}")
    HP = R + 16
    for d in range(4): a(f"v_cvt_pk_bf16_f32 v{HP+d}, v{HX+2*d}, v{HX+2*d+1}")
    for d in range(4):
        a(f"v_lshlrev_b32 v{HX+2*d}, 16, v{HP+d}")
        a(f"v_and_b32 v{HX+2*d+1}, s{SM}, v{HP+d}")
    a("s_lshl_b32 s3, s32, 10")
    a(f"s_add_u32 s3, s3, {WS_H}")
    a(f"buffer_store_dwordx4 v[{HP}:{HP+3}], v{V_KV}, s[24:27], s3 offen")
    layernorm(a, HX, R + 24, SM, 64)
    a(f"v_lshrrev_b32 v{T}, 1, v{V_LANE}")
    a(f"v_lshlrev_b32 v{T}, 8, v{T}")
    a(f"v_and_b32 v{T+1}, 1, v{V_LANE}")
    a(f"v_lshl_add_u32 v{T}, v{T+1}, 1, v{T}")
    a("s_lshl_b32 s3, s32, 2")
    a(f"s_add_u32 s3, s3, {WS_LN2P}")
    for j in range(8):
        a(f"buffer_store_short_d16_hi v{HX+j}, v{T}, s[24:27], s3 offen offset:{32*j}")
    a("K1_END2:")
    stamp_flush(a, 0, 24, T)
    a("K1_END:")
    a("s_endpgm")
    return lds_total

def gen_k2(a):
    L_RED, L_ACT, L_WD = 0, 16384, 16896
    lds_total = 16896 + 16384
    a.raw(f".globl {K2N}\n.p2align 8\n.type {K2N},@function\n{K2N}:")
    a(f"s_cmp_ge_u32 s2, {NW2}")
    a("s_cbranch_scc1 K2_END")
    a("s_load_dwordx2 s[40:41], s[0:1], 64")
    a("s_load_dwordx2 s[42:43], s[0:1], 88")
    stamp_init(a); stamp(a, 0)
    a("v_and_b32 v1, 63, v0")
    a("v_lshrrev_b32 v2, 6, v0")
    a("v_and_b32 v3, 7, v0")
    a("v_readfirstlane_b32 s34, v2")
    a("v_lshrrev_b32 v4, 3, v1")
    a("v_lshlrev_b32 v5, 4, v0")
    a("s_mov_b32 s35, 0xffff0000")
    SM = 35
    LNP = 16
    G = 32
    U = 36
    WD = 40
    ACC = 72
    T = 104
    a(f"v_lshl_add_u32 v{T}, v2, 4, v4")
    a(f"v_lshlrev_b32 v{T}, 5, v{T}")
    a("s_lshl_b32 s3, s2, 14")
    a(f"s_add_u32 s60, s3, {WS_GP}")
    a(f"s_add_u32 s61, s3, {WS_GP + WS_GPSZ}")
    a(f"s_mov_b32 s62, {WS_LN2P}")
    a("s_waitcnt lgkmcnt(0)")
    srd(a, 12, 40, 41, 1376 * 1024)
    srd(a, 16, 42, 43, WS_SIZE)
    a(f"buffer_load_dwordx4 v[{G}:{G+3}], v5, s[16:19], s60 offen")
    a(f"buffer_load_dwordx4 v[{U}:{U+3}], v5, s[16:19], s61 offen")
    for ip in range(2):
        for hf in range(2):
            a(f"buffer_load_dwordx4 v[{LNP+8*ip+4*hf}:{LNP+8*ip+4*hf+3}], v{T}, s[16:19], s62 offen offset:{256*ip+16*hf}")
    a(f"buffer_load_dwordx4 v[{WD}:{WD+3}], v5, s[12:15], s3 offen")
    for j in range(32): a(f"v_mov_b32 v{ACC+j}, 0")
    a("s_mov_b32 s60, 0x05040100")
    a("s_mov_b32 s61, 0x07060302")
    stamp(a, 1)
    a("s_waitcnt vmcnt(1)")
    stamp(a, 2)
    P = T + 4
    for ip in range(2):
        a(f"v_perm_b32 v{P}, v{G+2*ip+1}, v{G+2*ip}, s60")
        a(f"v_perm_b32 v{P+1}, v{G+2*ip+1}, v{G+2*ip}, s61")
        a(f"v_perm_b32 v{P+2}, v{U+2*ip+1}, v{U+2*ip}, s60")
        a(f"v_perm_b32 v{P+3}, v{U+2*ip+1}, v{U+2*ip}, s61")
        for b in range(8):
            for m in range(2):
                for c in range(2):
                    r = ACC + m * 16 + b * 2 + c
                    a(f"v_dot2_f32_bf16 v{r}, v{P+2*m+c}, v{LNP+8*ip+b}, v{r}")
    a("s_waitcnt vmcnt(0)")
    a(f"ds_write_b128 v5, v[{WD}:{WD+3}] offset:{L_WD}")
    for r in range(16): a(f"v_permlane32_swap_b32 v{ACC+r}, v{ACC+16+r}")
    for r in range(16): a(f"v_add_f32 v{ACC+r}, v{ACC+r}, v{ACC+16+r}")
    for b in range(8): a(f"v_permlane16_swap_b32 v{ACC+2*b}, v{ACC+2*b+1}")
    for b in range(8): a(f"v_add_f32 v{ACC+2*b}, v{ACC+2*b}, v{ACC+2*b+1}")
    X = ACC + 16
    for bp in range(4):
        a(f"v_add_f32_dpp v{X+bp}, v{ACC+4*bp}, v{ACC+4*bp} row_ror:8 row_mask:0xf bank_mask:0x3")
    for bp in range(4):
        a(f"v_add_f32_dpp v{X+bp}, v{ACC+4*bp+2}, v{ACC+4*bp+2} row_ror:8 row_mask:0xf bank_mask:0xc")
    a(f"v_lshrrev_b32 v{T}, 5, v1")
    a(f"v_lshlrev_b32 v{T}, 9, v{T}")
    a(f"v_bfe_u32 v{T+1}, v1, 3, 1")
    a(f"v_lshl_add_u32 v{T}, v{T+1}, 6, v{T}")
    a(f"v_lshl_add_u32 v{T}, v3, 3, v{T}")
    a(f"v_bfe_u32 v{T+1}, v1, 4, 1")
    a(f"v_lshl_add_u32 v{T}, v{T+1}, 2, v{T}")
    a(f"v_lshl_add_u32 v{T}, v2, 10, v{T}")
    for bp in range(4):
        a(f"ds_write_b32 v{T}, v{X+bp} offset:{L_RED+128*bp}")
    a("s_waitcnt lgkmcnt(0)")
    a("s_barrier")
    stamp(a, 3)
    a(f"v_and_b32 v{T+8}, 127, v0")
    a(f"v_lshlrev_b32 v{T+8}, 3, v{T+8}")
    for f in range(16):
        a(f"ds_read_b64 v[{WD+2*f}:{WD+2*f+1}], v{T+8} offset:{L_WD+1024*f}")
    a("s_cmp_ge_u32 s34, 2")
    a("s_cbranch_scc1 K2_SKIP_ACT")
    a(f"v_lshlrev_b32 v{T}, 2, v0")
    for w in range(16):
        a(f"ds_read2st64_b32 v[{ACC+2*w}:{ACC+2*w+1}], v{T} offset0:{4*w} offset1:{4*w+2}")
    a("s_waitcnt lgkmcnt(0)")
    for st in (8, 4, 2, 1):
        for j in range(st):
            a(f"v_add_f32 v{ACC+2*j}, v{ACC+2*j}, v{ACC+2*(j+st)}")
            a(f"v_add_f32 v{ACC+2*j+1}, v{ACC+2*j+1}, v{ACC+2*(j+st)+1}")
    g, u = ACC, ACC + 1
    bf16r(a, g, g, SM)
    bf16r(a, u, u, SM)
    a(f"v_mul_f32 v{T+1}, 0xbfb8aa3b, v{g}")
    a(f"v_exp_f32 v{T+1}, v{T+1}")
    a(f"v_add_f32 v{T+1}, 1.0, v{T+1}")
    a(f"v_rcp_f32 v{T+2}, v{T+1}")
    a(f"v_mul_f32 v{T+3}, v{g}, v{T+2}")
    a(f"v_fma_f32 v{T+4}, -v{T+3}, v{T+1}, v{g}")
    a(f"v_fma_f32 v{T+4}, v{T+4}, v{T+2}, v{T+3}")
    a(f"v_cmp_u_f32 vcc, v{T+4}, v{T+4}")
    a(f"v_cndmask_b32 v{T+3}, v{T+4}, v{T+3}, vcc")
    bf16r(a, T + 3, T + 3, SM)
    a(f"v_mul_f32 v{T+3}, v{T+3}, v{u}")
    bf16r(a, T + 3, T + 3, SM)
    a(f"ds_write_b32 v{T}, v{T+3} offset:{L_ACT}")
    a("s_waitcnt lgkmcnt(0)")
    a("K2_SKIP_ACT:")
    a("s_barrier")
    stamp(a, 4)
    a(f"v_lshrrev_b32 v{T}, 7, v0")
    a(f"v_lshlrev_b32 v{T+1}, 6, v{T}")
    AH = ACC; AL = ACC + 16
    for q in range(4):
        a(f"ds_read_b128 v[{AH+4*q}:{AH+4*q+3}], v{T+1} offset:{L_ACT+16*q}")
    O = T + 4
    for j in range(4): a(f"v_mov_b32 v{O+j}, 0")
    a("s_waitcnt lgkmcnt(0)")
    for f in range(16): a(f"v_lshrrev_b32 v{AL+f}, 16, v{AH+f}")
    for f in range(16):
        a(f"v_dot2_f32_bf16 v{O}, v{WD+2*f}, v{AL+f}, v{O}")
        a(f"v_dot2_f32_bf16 v{O+1}, v{WD+2*f}, v{AH+f}, v{O+1}")
        a(f"v_dot2_f32_bf16 v{O+2}, v{WD+2*f+1}, v{AL+f}, v{O+2}")
        a(f"v_dot2_f32_bf16 v{O+3}, v{WD+2*f+1}, v{AH+f}, v{O+3}")
    a(f"s_add_u32 s3, s3, {WS_PART2}")
    a(f"buffer_store_dwordx4 v[{O}:{O+3}], v5, s[16:19], s3 offen")
    stamp_flush(a, 1, 16, T)
    a("K2_END:")
    a("s_endpgm")
    return lds_total

def gen_k3(a):
    lds_total = 8192
    a.raw(f".globl {K3N}\n.p2align 8\n.type {K3N},@function\n{K3N}:")
    a("s_cmp_ge_u32 s2, 32")
    a("s_cbranch_scc1 K3_END")
    a("s_load_dwordx2 s[36:37], s[0:1], 72")
    a("s_load_dwordx2 s[38:39], s[0:1], 88")
    stamp_init(a); stamp(a, 0)
    a("v_and_b32 v1, 31, v0")
    a("v_lshrrev_b32 v2, 5, v0")
    a("s_mov_b32 s35, 0xffff0000")
    SM = 35
    a("s_waitcnt lgkmcnt(0)")
    srd(a, 4, 36, 37, 8192)
    srd(a, 8, 38, 39, WS_SIZE)
    a(f"s_add_u32 s40, s38, {WS_PART2}\ns_addc_u32 s41, s39, 0")
    srd(a, 12, 40, 41, NW2 * 16384)
    a("v_lshlrev_b32 v3, 14, v2")
    a("v_lshl_add_u32 v3, v1, 4, v3")
    a("s_lshl_b32 s3, s2, 9")
    for j in range(6):
        a(f"buffer_load_dwordx4 v[{8+4*j}:{11+4*j}], v3, s[12:15], s3 offen")
        if j < 5: a("s_add_u32 s3, s3, 262144")
    a("v_lshlrev_b32 v5, 2, v0")
    a("s_lshl_b32 s3, s2, 8")
    a(f"s_add_u32 s42, s3, {WS_H}")
    a("buffer_load_dword v6, v5, s[8:11], s42 offen")
    a("s_waitcnt vmcnt(1)")
    for e in range(4):
        a(f"v_add_f32 v{8+e}, v{8+e}, v{12+e}")
        a(f"v_add_f32 v{16+e}, v{16+e}, v{20+e}")
        a(f"v_add_f32 v{24+e}, v{24+e}, v{28+e}")
        a(f"v_add_f32 v{8+e}, v{8+e}, v{16+e}")
        a(f"v_add_f32 v{8+e}, v{8+e}, v{24+e}")
    a("v_lshlrev_b32 v4, 4, v0")
    a("ds_write_b128 v4, v[8:11]")
    a("s_waitcnt lgkmcnt(0)")
    a("s_barrier")
    a("v_readfirstlane_b32 s34, v0")
    a("s_cmp_ge_u32 s34, 64")
    a("s_cbranch_scc1 K3_END")
    a("v_lshlrev_b32 v4, 3, v0")
    for p in range(16):
        a(f"ds_read_b64 v[{8+2*p}:{9+2*p}], v4 offset:{512*p}")
    a("s_waitcnt vmcnt(0) lgkmcnt(0)")
    for st in (8, 4, 2, 1):
        for j in range(st):
            a(f"v_add_f32 v{8+2*j}, v{8+2*j}, v{8+2*(j+st)}")
            a(f"v_add_f32 v{9+2*j}, v{9+2*j}, v{9+2*(j+st)}")
    bf16r(a, 8, 8, SM)
    bf16r(a, 9, 9, SM)
    a("v_lshlrev_b32 v10, 16, v6")
    a(f"v_and_b32 v11, s{SM}, v6")
    a("v_add_f32 v8, v8, v10")
    a("v_add_f32 v9, v9, v11")
    a("v_cvt_pk_bf16_f32 v8, v8, v9")
    a("buffer_store_dword v8, v5, s[4:7], s3 offen")
    stamp_flush(a, 2, 8, 40)
    a("K3_END:")
    a("s_endpgm")
    return lds_total

def main(out):
    a = Asm()
    l1 = gen_k1(a)
    l2 = gen_k2(a)
    l3 = gen_k3(a)
    body = a.finish()
    txt = HEADER
    txt += f"; @launch kernel={NAME} grid=(256,1,1) block=(1024,1,1) lds={l1}\n"
    txt += f"; @launch kernel={K2N} grid=({NW2},1,1) block=(1024,1,1) lds={l2}\n"
    txt += f"; @launch kernel={K3N} grid=(32,1,1) block=(512,1,1) lds={l3}\n"
    txt += '.amdgcn_target "amdgcn-amd-amdhsa--gfx950"\n.text\n'
    txt += body
    txt += '.section .rodata,"a"\n'
    txt += kd(NAME, 128) + kd(K2N, 116) + kd(K3N, 48)
    open(out, "w").write(txt)

if __name__ == "__main__":
    if len(sys.argv) > 2 and sys.argv[2] == "stamps": STAMPS = True
    main(sys.argv[1] if len(sys.argv) > 1 else "sequential_preLN__mha_block_cached__swiglu_ffn__decode.s")
```

```python
import sys
from asmlib import Asm

NAME = "sequential_preLN__mha_block_cached__swiglu_ffn__decode_kernel"
K2N = "ffn_mid_kernel"
K3N = "ffn_out_kernel"

WS_PART1 = 0x0
WS_H     = 0x80000
WS_LN2P  = 0x82000
WS_PART2 = 0x100000
NW2 = 86
WS_GP    = 0x280000
WS_GPSZ  = 86 * 16384
WS_SIZE  = 0x800000

HEADER = open("sequential_preLN__mha_block_cached__swiglu_ffn__decode.s.ref").read().split("; Override launch")[0]

STAMPS = False
PVAR = "A"
PSTAMP = False
PERWAVE = False
WS_TS = 0x600000
def stamp(a, idx):
    if not STAMPS: return
    a("s_memrealtime s[90:91]")
    a("s_waitcnt lgkmcnt(0)")
    a(f"s_mov_b32 s{80+idx}, s90")

def stamp_init(a):
    if not STAMPS: return
    for i in range(8): a(f"s_mov_b32 s{80+i}, 0")

def stamp_flush(a, kid, srd_ws, vt, wave_sreg=34):
    if not STAMPS: return
    stamp(a, 7)
    lab = f"STF_{kid}"
    if PERWAVE and kid == 0:
        a("s_lshl_b32 s90, s2, 9")
        a(f"s_lshl_b32 s91, s{wave_sreg}, 5")
        a("s_add_u32 s90, s90, s91")
        a(f"s_add_u32 s90, s90, {WS_TS + 3*65536}")
    else:
        a(f"s_cmp_lg_u32 s{wave_sreg}, 0")
        a(f"s_cbranch_scc1 {lab}")
        a("s_lshl_b32 s90, s2, 5")
        a(f"s_add_u32 s90, s90, {WS_TS + kid*65536}")
    a("s_mov_b64 exec, 1")
    a(f"v_mov_b32 v{vt+1}, 0")
    for i in range(8):
        a(f"v_mov_b32 v{vt}, s{80+i}")
        a(f"buffer_store_dword v{vt}, v{vt+1}, s[{srd_ws}:{srd_ws+3}], s90 offen offset:{4*i}")
    a(f"{lab}:")

class VM:
    def __init__(self, a): self.q = []; self.a = a
    def issue(self, tag, n=1): self.q += [tag] * n
    def wait(self, tag):
        idx = max(i for i, t in enumerate(self.q) if t == tag)
        n = len(self.q) - 1 - idx
        self.a(f"s_waitcnt vmcnt({n})")
        self.q = self.q[idx + 1:]
    def drain(self):
        self.a("s_waitcnt vmcnt(0)"); self.q = []

def srd(a, d, lo, hi, size):
    a(f"s_mov_b32 s{d}, s{lo}")
    a(f"s_and_b32 s{d+1}, s{hi}, 0xffff")
    a(f"s_mov_b32 s{d+2}, {size}")
    a(f"s_mov_b32 s{d+3}, 0x00020000")

def row_reduce(a, op, src, t0, t1):
    a(f"{op}_dpp v{t0}, v{src}, v{src} quad_perm:[1,0,3,2] row_mask:0xf bank_mask:0xf")
    a(f"{op}_dpp v{t1}, v{t0}, v{t0} quad_perm:[2,3,0,1] row_mask:0xf bank_mask:0xf")
    a(f"{op}_dpp v{t0}, v{t1}, v{t1} row_half_mirror row_mask:0xf bank_mask:0xf")
    a(f"{op}_dpp v{t1}, v{t0}, v{t0} row_mirror row_mask:0xf bank_mask:0xf")

def wave_reduce(a, op, src, dst, t0, t1, sb):
    row_reduce(a, op, src, t0, t1)
    for i in range(4):
        a(f"v_readlane_b32 s{sb+i}, v{t1}, {16*i}")
    a(f"v_mov_b32 v{dst}, s{sb}")
    for i in range(1, 4):
        a(f"{op} v{dst}, s{sb+i}, v{dst}")

def bf16r(a, dst, src, smask):
    a(f"v_cvt_pk_bf16_f32 v{dst}, v{src}, v{src}")
    a(f"v_and_b32 v{dst}, s{smask}, v{dst}")

def layernorm(a, X, T, smask, sb):
    s0, s1, t0, t1, mean, mbf, sd, rs = T, T+1, T+2, T+3, T+4, T+5, T+6, T+7
    D = T + 8
    a(f"v_add_f32 v{s0}, v{X}, v{X+1}")
    a(f"v_add_f32 v{s1}, v{X+2}, v{X+3}")
    a(f"v_add_f32 v{s0}, v{s0}, v{X+4}")
    a(f"v_add_f32 v{s1}, v{s1}, v{X+5}")
    a(f"v_add_f32 v{s0}, v{s0}, v{X+6}")
    a(f"v_add_f32 v{s1}, v{s1}, v{X+7}")
    a(f"v_add_f32 v{s0}, v{s0}, v{s1}")
    wave_reduce(a, "v_add_f32", s0, mean, t0, t1, sb)
    a(f"v_mul_f32 v{mean}, 0x3b000000, v{mean}")
    a(f"v_mov_b32 v{s0}, 0")
    a(f"v_mov_b32 v{s1}, 0")
    for j in range(0, 8, 2):
        a(f"v_sub_f32 v{D}, v{X+j}, v{mean}")
        a(f"v_sub_f32 v{D+1}, v{X+j+1}, v{mean}")
        a(f"v_fmac_f32 v{s0}, v{D}, v{D}")
        a(f"v_fmac_f32 v{s1}, v{D+1}, v{D+1}")
    a(f"v_add_f32 v{s0}, v{s0}, v{s1}")
    wave_reduce(a, "v_add_f32", s0, sd, t0, t1, sb)
    a(f"v_mul_f32 v{sd}, 0x3b000000, v{sd}")
    bf16r(a, sd, sd, smask)
    a(f"v_add_f32 v{sd}, 0x3727c5ac, v{sd}")
    bf16r(a, sd, sd, smask)
    a(f"v_sqrt_f32 v{sd}, v{sd}")
    bf16r(a, sd, sd, smask)
    bf16r(a, mbf, mean, smask)
    a(f"v_rcp_f32 v{rs}, v{sd}")
    for j in range(8):
        a(f"v_sub_f32 v{D}, v{X+j}, v{mbf}")
        bf16r(a, D, D, smask)
        a(f"v_mul_f32 v{D+1}, v{D}, v{rs}")
        a(f"v_fma_f32 v{D+2}, -v{D+1}, v{sd}, v{D}")
        a(f"v_fma_f32 v{D+1}, v{D+2}, v{rs}, v{D+1}")
        bf16r(a, X+j, D+1, smask)

def kd(name, vgpr, sgpr=96):
    acc = (vgpr + 3) // 4 * 4
    return f""".p2align 6
.amdhsa_kernel {name}
  .amdhsa_next_free_vgpr {vgpr}
  .amdhsa_next_free_sgpr {sgpr}
  .amdhsa_accum_offset {acc}
  .amdhsa_group_segment_fixed_size 0
  .amdhsa_kernarg_size 96
  .amdhsa_user_sgpr_count 2
  .amdhsa_user_sgpr_kernarg_segment_ptr 1
  .amdhsa_system_sgpr_workgroup_id_x 1
  .amdhsa_float_denorm_mode_32 3
.end_amdhsa_kernel
"""

def gen_k1(a):
    L_LN, L_SC, L_WO = 0, 0, 0
    L_QP, L_LA = 32768, 32768
    L_RED, L_OP, L_FLAG, L_CTR = 40960, 41216, 49408, 49412
    lds_total = 49664
    NS = 3
    a.raw(f".globl {NAME}\n.p2align 8\n.type {NAME},@function\n{NAME}:")
    a("s_cmp_ge_u32 s2, 256")
    a("s_cbranch_scc1 K1_END")
    a("s_load_dwordx16 s[36:51], s[0:1], 0")
    a("s_load_dwordx8 s[52:59], s[0:1], 64")
    stamp_init(a); stamp(a, 0)
    V_LANE, V_C, V_R, V_KV = 1, 2, 3, 4
    Q = 5
    MX = 9
    XR = 10
    VPA, VSC = 14, 15
    W = 16
    KB = 48
    ACC = 96
    T = 104
    SID = 70
    a(f"v_and_b32 v{V_LANE}, 63, v0")
    a(f"v_lshrrev_b32 v{T}, 6, v0")
    a(f"v_and_b32 v{V_C}, 15, v0")
    a(f"v_readfirstlane_b32 s34, v{T}")
    a(f"v_lshrrev_b32 v{V_R}, 4, v{V_LANE}")
    a(f"v_lshlrev_b32 v{V_KV}, 4, v{V_LANE}")
    a("s_lshr_b32 s32, s2, 5")
    a("s_and_b32 s33, s2, 31")
    a("s_mov_b32 s35, 0xffff0000")
    SM = 35
    a("s_waitcnt lgkmcnt(0)")
    srd(a, 4, 36, 37, 8192)
    a("s_lshl_b32 s3, s2, 20")
    a("s_lshr_b32 s60, s2, 12")
    a("s_add_u32 s38, s38, s3\ns_addc_u32 s39, s39, s60")
    a("s_add_u32 s40, s40, s3\ns_addc_u32 s41, s41, s60")
    srd(a, 8, 38, 39, 0x100000)
    srd(a, 12, 40, 41, 0x100000)
    srd(a, 16, 42, 43, 0x400000)
    srd(a, 20, 44, 45, 0x400000)
    srd(a, 24, 58, 59, WS_SIZE)
    srd(a, 28, 56, 57, 256)
    a("s_bitcmp1_b32 s2, 0")
    a("s_cselect_b32 s48, s50, s48")
    a("s_cselect_b32 s49, s51, s49")
    srd(a, 36, 48, 49, 512 * 2752)
    a("s_mov_b32 s42, 0x100000")
    a("s_mov_b32 s43, 0x00020000")
    a("s_lshl_b32 s3, s32, 10")
    a(f"buffer_load_dwordx4 v[{XR}:{XR+3}], v{V_KV}, s[4:7], s3 offen")
    a("s_lshl_b32 s3, s34, 5")
    a(f"v_add_u32 v{T+1}, s3, v{V_R}")
    a(f"v_lshlrev_b32 v{T+1}, 13, v{T+1}")
    a(f"v_lshl_add_u32 v{T+1}, v{V_C}, 4, v{T+1}")
    a("s_lshl_b32 s3, s33, 8")
    for i in range(8):
        a(f"buffer_load_dwordx4 v[{W+4*i}:{W+4*i+3}], v{T+1}, s[16:19], s3 offen")
        if i < 7: a("s_add_u32 s3, s3, 32768")
    a("s_mul_i32 s75, s2, 37")
    a("s_and_b32 s75, s75, 255")
    def first_k(sets):
        for s in sets:
            a(f"s_add_u32 s{SID+s}, s34, {16*s}")
            a(f"s_add_u32 s61, s{SID+s}, s75")
            a("s_and_b32 s61, s61, 255")
            a(f"s_lshl_b32 s61, s61, 12")
            for k in range(4):
                a(f"buffer_load_dwordx4 v[{KB+16*s+4*k}:{KB+16*s+4*k+3}], v{V_KV}, s[8:11], s61 offen offset:{1024*k} nt")
    a("s_barrier")
    first_k([0])
    a("s_waitcnt vmcnt(12)")
    if PSTAMP: stamp(a, 1)
    X = T
    for d in range(4):
        a(f"v_lshlrev_b32 v{X+2*d}, 16, v{XR+d}")
        a(f"v_and_b32 v{X+2*d+1}, s{SM}, v{XR+d}")
    layernorm(a, X, T + 8, SM, 64)
    a("s_lshl_b32 s3, s34, 11")
    a(f"v_lshl_add_u32 v{T+8}, v{V_LANE}, 5, s3")
    a(f"ds_write_b128 v{T+8}, v[{X}:{X+3}] offset:{L_LN}")
    a(f"ds_write_b128 v{T+8}, v[{X+4}:{X+7}] offset:{L_LN+16}")
    a("s_lshl_b32 s62, s34, 7")
    a("s_add_u32 s3, s3, s62")
    a(f"v_lshl_add_u32 v{T+8}, v{V_R}, 2, s3")
    a("s_waitcnt lgkmcnt(0)")
    LNV = T
    for i in range(8):
        a(f"ds_read_b32 v{LNV+i}, v{T+8} offset:{L_LN+16*i}")
    a(f"v_mov_b32 v{T+9}, 48")
    a(f"v_mov_b32 v{T+10}, 0")
    a(f"ds_write_b32 v{T+10}, v{T+9} offset:{L_CTR}")
    a("s_waitcnt vmcnt(4) lgkmcnt(0)")
    if PSTAMP: stamp(a, 2)
    QA = ACC
    for j in range(8): a(f"v_mov_b32 v{QA+j}, 0")
    for i in range(8):
        a(f"v_lshrrev_b32 v{T+8+(i%2)}, 16, v{LNV+i}")
        for d in range(4):
            a(f"v_dot2_f32_bf16 v{QA+2*d}, v{W+4*i+d}, v{T+8+(i%2)}, v{QA+2*d}")
            a(f"v_dot2_f32_bf16 v{QA+2*d+1}, v{W+4*i+d}, v{LNV+i}, v{QA+2*d+1}")
    first_k([1, 2])
    def wo_loads():
        a("s_lshl_b32 s3, s33, 7")
        a("s_lshl_b32 s62, s34, 3")
        a("s_add_u32 s3, s3, s62")
        a("s_lshl_b32 s3, s3, 10")
        for i in range(8):
            if i == 4: a("s_add_u32 s3, s3, 4096")
            a(f"buffer_load_dwordx4 v[{W+4*i}:{W+4*i+3}], v{V_KV}, s[20:23], s3 offen offset:{1024*(i%4)}")
    def rows_reduce8(A8):
        for p in range(4):
            a(f"v_permlane32_swap_b32 v{A8+2*p}, v{A8+2*p+1}")
        for p in range(4):
            a(f"v_add_f32 v{A8+2*p}, v{A8+2*p}, v{A8+2*p+1}")
        a(f"v_permlane16_swap_b32 v{A8}, v{A8+2}")
        a(f"v_permlane16_swap_b32 v{A8+4}, v{A8+6}")
        a(f"v_add_f32 v{A8}, v{A8}, v{A8+2}")
        a(f"v_add_f32 v{A8+4}, v{A8+4}, v{A8+6}")
    rows_reduce8(QA)
    a(f"v_and_b32 v{T}, 1, v{V_R}")
    a(f"v_lshlrev_b32 v{T}, 3, v{T}")
    a(f"v_lshrrev_b32 v{T+1}, 1, v{V_R}")
    a(f"v_lshl_add_u32 v{T}, v{T+1}, 2, v{T}")
    a(f"v_lshl_add_u32 v{T}, v{V_C}, 5, v{T}")
    a("s_lshl_b32 s3, s34, 9")
    a(f"v_add_u32 v{VPA}, s3, v{T}")
    a(f"v_lshrrev_b32 v{VSC}, 2, v{V_LANE}")
    a(f"v_lshlrev_b32 v{VSC}, 2, v{VSC}")
    a(f"ds_write_b32 v{VPA}, v{QA} offset:{L_QP}")
    a(f"ds_write_b32 v{VPA}, v{QA+4} offset:{L_QP+16}")
    a("s_waitcnt lgkmcnt(0)")
    a("s_barrier")
    if PSTAMP: stamp(a, 3)
    a(f"v_lshlrev_b32 v{T+16}, 3, v{V_LANE}")
    for half in range(2):
        for w in range(8):
            a(f"ds_read_b64 v[{T+2*w}:{T+2*w+1}], v{T+16} offset:{L_QP+(half*8+w)*512}")
        a("s_waitcnt lgkmcnt(0)")
        for e in range(2):
            a(f"v_add_f32 v{T+e}, v{T+e}, v{T+2+e}")
            a(f"v_add_f32 v{T+4+e}, v{T+4+e}, v{T+6+e}")
            a(f"v_add_f32 v{T+8+e}, v{T+8+e}, v{T+10+e}")
            a(f"v_add_f32 v{T+12+e}, v{T+12+e}, v{T+14+e}")
            a(f"v_add_f32 v{T+e}, v{T+e}, v{T+4+e}")
            a(f"v_add_f32 v{T+8+e}, v{T+8+e}, v{T+12+e}")
            if half == 0:
                a(f"v_add_f32 v{ACC+e}, v{T+e}, v{T+8+e}")
            else:
                a(f"v_add_f32 v{T+e}, v{T+e}, v{T+8+e}")
                a(f"v_add_f32 v{ACC+e}, v{ACC+e}, v{T+e}")
    a(f"v_cvt_pk_bf16_f32 v{ACC}, v{ACC}, v{ACC+1}")
    a(f"v_lshlrev_b32 v{T}, 4, v{V_C}")
    for k in range(4):
        a(f"v_add_u32 v{T+1+k}, {4*k}, v{T}")
    for k in range(4):
        a(f"ds_bpermute_b32 v{Q+k}, v{T+1+k}, v{ACC}")
    a("s_waitcnt lgkmcnt(0)")
    stamp(a, 4 if PSTAMP else 1)
    a(f"v_mov_b32 v{MX}, 0xff800000")
    a("s_mov_b32 s63, 0x3db504f3")
    V_ONE, V_CTRA, V_ID = T + 20, T + 21, T + 22
    a(f"v_mov_b32 v{V_ONE}, 1")
    a(f"v_mov_b32 v{V_CTRA}, {L_CTR}")
    def req_id():
        a("s_mov_b64 exec, 1")
        a(f"ds_add_rtn_u32 v{V_ID}, v{V_CTRA}, v{V_ONE}")
        a("s_mov_b64 exec, -1")
    def issue_next(s):
        a("s_cmp_lt_u32 s74, 256")
        a("s_cselect_b32 s40, s8, s12")
        a("s_cselect_b32 s41, s9, s13")
        a("s_add_u32 s61, s74, s75")
        a("s_and_b32 s61, s61, 255")
        a("s_lshl_b32 s61, s61, 12")
        a("s_cmp_lt_u32 s74, 512")
        a("s_cselect_b32 s61, s61, 0x100000")
        for k in range(4):
            a(f"buffer_load_dwordx4 v[{KB+16*s+4*k}:{KB+16*s+4*k+3}], v{V_KV}, s[40:43], s61 offen offset:{1024*k} nt")
    A0, B0, C0 = T, T + 4, T + 6
    for s in range(NS):
        a(f"K1_K{s}:")
        a(f"s_cmp_ge_u32 s{SID+s}, 256")
        a(f"s_cbranch_scc0 K1_KB{s}")
        a(f"s_mov_b32 s73, {s}")
        a("s_branch K1_SOFTMAX")
        a(f"K1_KB{s}:")
        req_id()
        a("s_waitcnt vmcnt(8)")
        base = KB + 16 * s
        for d in range(4):
            for k in range(4):
                c = "0" if d == 0 else f"v{A0+k}"
                a(f"v_dot2_f32_bf16 v{A0+k}, v{base+4*k+d}, v{Q+d}, {c}")
        a("s_waitcnt lgkmcnt(0)")
        a(f"v_readfirstlane_b32 s74, v{V_ID}")
        issue_next(s)
        a(f"v_add_f32_dpp v{B0}, v{A0}, v{A0} row_ror:8 row_mask:0xf bank_mask:0x3")
        a(f"v_add_f32_dpp v{B0+1}, v{A0+2}, v{A0+2} row_ror:8 row_mask:0xf bank_mask:0x3")
        a(f"v_add_f32_dpp v{B0}, v{A0+1}, v{A0+1} row_ror:8 row_mask:0xf bank_mask:0xc")
        a(f"v_add_f32_dpp v{B0+1}, v{A0+3}, v{A0+3} row_ror:8 row_mask:0xf bank_mask:0xc")
        a(f"v_add_f32_dpp v{C0}, v{B0}, v{B0} row_half_mirror row_mask:0xf bank_mask:0x5")
        a(f"v_add_f32_dpp v{C0}, v{B0+1}, v{B0+1} row_half_mirror row_mask:0xf bank_mask:0xa")
        a(f"v_add_f32_dpp v{C0+1}, v{C0}, v{C0} quad_perm:[1,0,3,2] row_mask:0xf bank_mask:0xf")
        a(f"v_add_f32_dpp v{C0}, v{C0+1}, v{C0+1} quad_perm:[2,3,0,1] row_mask:0xf bank_mask:0xf")
        a(f"s_lshl_b32 s3, s{SID+s}, 6")
        a(f"v_add_u32 v{C0+1}, s3, v{VSC}")
        bf16r(a, C0, C0, SM)
        a(f"v_mul_f32 v{C0}, s63, v{C0}")
        bf16r(a, C0, C0, SM)
        a(f"ds_write_b32 v{C0+1}, v{C0} offset:{L_SC}")
        a(f"v_max_f32 v{MX}, v{MX}, v{C0}")
        a(f"s_mov_b32 s{SID+s}, s74")
        if s == NS - 1: a("s_branch K1_K0")
    a("K1_SOFTMAX:")
    if not PSTAMP: stamp(a, 2)
    RP = T + 12
    a(f"v_cmp_gt_u32 vcc, 688, v0")
    a("s_and_saveexec_b64 s[66:67], vcc")
    a("s_cbranch_execz K1_RP1")
    a("s_lshr_b32 s3, s2, 4")
    a("s_lshl_b32 s3, s3, 5")
    a("s_bfe_u32 s62, s2, 0x30001")
    a("s_add_u32 s3, s3, s62")
    a("s_mul_i32 s3, s3, 2752")
    a(f"v_lshlrev_b32 v{T+16}, 2, v0")
    for ii in range(4):
        a(f"buffer_load_dword v{RP+ii}, v{T+16}, s[36:39], s3 offen")
        if ii < 3: a("s_add_u32 s3, s3, 22016")
    a("K1_RP1:")
    a("s_mov_b64 exec, s[66:67]")
    LOG2E = "0x3fb8aa3b"
    GM, GS, RS = T + 8, T + 9, T + 10
    wave_reduce(a, "v_max_f32", MX, T + 2, T, T + 1, 64)
    a("s_lshl_b32 s3, s34, 2")
    a(f"v_mov_b32 v{T}, s3")
    a(f"ds_write_b32 v{T}, v{T+2} offset:{L_RED}")
    a("s_waitcnt lgkmcnt(0)")
    a("s_barrier")
    a(f"v_lshlrev_b32 v{T+11}, 2, v{V_C}")
    a(f"v_lshlrev_b32 v{T+3}, 4, v0")
    a(f"ds_read_b32 v{T+2}, v{T+11} offset:{L_RED}")
    a(f"ds_read_b128 v[{T+4}:{T+7}], v{T+3} offset:{L_SC}")
    a(f"s_mov_b32 s63, {LOG2E}")
    a("s_waitcnt lgkmcnt(1)")
    row_reduce(a, "v_max_f32", T + 2, T, GM)
    a("s_waitcnt lgkmcnt(0)")
    for e in range(4):
        a(f"v_sub_f32 v{T+4+e}, v{T+4+e}, v{GM}")
    for e in range(4):
        a(f"v_mul_f32 v{T+4+e}, s63, v{T+4+e}")
    for e in range(4):
        a(f"v_exp_f32 v{T+4+e}, v{T+4+e}")
    a(f"v_add_f32 v{T+4}, v{T+4}, v{T+5}")
    a(f"v_add_f32 v{T+6}, v{T+6}, v{T+7}")
    a(f"v_add_f32 v{T+4}, v{T+4}, v{T+6}")
    wave_reduce(a, "v_add_f32", T + 4, T + 2, T, T + 1, 64)
    a(f"v_mov_b32 v{T}, s3")
    a(f"ds_write_b32 v{T}, v{T+2} offset:{L_RED+64}")
    a("s_waitcnt lgkmcnt(0)")
    a("s_barrier")
    a(f"ds_read_b32 v{T+2}, v{T+11} offset:{L_RED+64}")
    a("s_waitcnt lgkmcnt(0)")
    row_reduce(a, "v_add_f32", T + 2, T, GS)
    a(f"v_rcp_f32 v{RS}, v{GS}")
    for j in range(8): a(f"v_mov_b32 v{ACC+j}, 0")
    a("s_mov_b32 s76, 3")
    def one_time(tag):
        a(f"v_cmp_gt_u32 vcc, 688, v0")
        a("s_and_saveexec_b64 s[66:67], vcc")
        a(f"s_cbranch_execz K1_RP2{tag}")
        a(f"v_lshrrev_b32 v{T+16}, 3, v0")
        a(f"v_lshlrev_b32 v{T+16}, 14, v{T+16}")
        a(f"v_and_b32 v{T+17}, 7, v0")
        a(f"v_lshl_add_u32 v{T+16}, v{T+17}, 4, v{T+16}")
        a("s_lshr_b32 s3, s2, 4")
        a("s_lshl_b32 s3, s3, 10")
        a("s_bfe_u32 s62, s2, 0x30001")
        a("s_lshl_b32 s62, s62, 7")
        a("s_add_u32 s3, s3, s62")
        a("s_bitcmp1_b32 s2, 0")
        a(f"s_cselect_b32 s62, {WS_GPSZ}, 0")
        a("s_add_u32 s3, s3, s62")
        a(f"s_add_u32 s3, s3, {WS_GP}")
        a(f"buffer_store_dwordx4 v[{RP}:{RP+3}], v{T+16}, s[24:27], s3 offen")
        a(f"K1_RP2{tag}:")
        a("s_mov_b64 exec, s[66:67]")
        wo_loads()
    if not PSTAMP: stamp(a, 3)
    a("s_cmp_eq_u32 s73, 1")
    a("s_cbranch_scc1 K1_V1")
    a("s_cmp_eq_u32 s73, 2")
    a("s_cbranch_scc1 K1_V2")
    BANK = [0, 2, 1, 3]
    for s in range(NS):
        a(f"K1_V{s}:")
        a(f"s_cmp_ge_u32 s{SID+s}, 512")
        a("s_cbranch_scc1 K1_VDONE")
        req_id()
        a(f"s_lshl_b32 s3, s{SID+s}, 6")
        a("s_sub_u32 s3, s3, 16384")
        a(f"v_add_u32 v{T+1}, s3, v{VSC}")
        a(f"ds_read_b32 v{T}, v{T+1} offset:{L_SC}")
        a("s_waitcnt lgkmcnt(0)")
        a(f"v_readfirstlane_b32 s74, v{V_ID}")
        PH, PL = T + 5, T + 6
        a(f"v_sub_f32 v{T}, v{T}, v{GM}")
        a(f"v_mul_f32 v{T}, s63, v{T}")
        a(f"v_exp_f32 v{T}, v{T}")
        a(f"v_mul_f32 v{T+1}, v{T}, v{RS}")
        a(f"v_fma_f32 v{T+2}, -v{T+1}, v{GS}, v{T}")
        a(f"v_fma_f32 v{T+1}, v{T+2}, v{RS}, v{T+1}")
        bf16r(a, PH, T + 1, SM)
        a(f"v_lshrrev_b32 v{PL}, 16, v{PH}")
        a("s_waitcnt vmcnt(8)")
        base = KB + 16 * s
        for k in range(4):
            bc = 4 * BANK[k]
            for d in range(4):
                a(f"v_dot2c_f32_bf16_dpp v{ACC+2*d}, v{PL}, v{base+4*k+d} row_newbcast:{bc} row_mask:0xf bank_mask:0xf")
                a(f"v_dot2c_f32_bf16_dpp v{ACC+2*d+1}, v{PH}, v{base+4*k+d} row_newbcast:{bc} row_mask:0xf bank_mask:0xf")
        issue_next(s)
        a(f"s_mov_b32 s{SID+s}, s74")
        a("s_sub_u32 s76, s76, 1")
        a("s_cmp_lg_u32 s76, 0")
        a(f"s_cbranch_scc1 K1_VN{s}")
        one_time(f"_{s}")
        a(f"K1_VN{s}:")
        if s == NS - 1: a("s_branch K1_V0")
    a("K1_VDONE:")
    a("s_cmp_gt_i32 s76, 0")
    a("s_cbranch_scc0 K1_VD2")
    a("s_waitcnt vmcnt(0)")
    one_time("_e")
    a("K1_VD2:")
    a("s_nop 4")
    if not PSTAMP: stamp(a, 4)
    S = KB
    rows_reduce8(ACC)
    a(f"ds_write_b32 v{VPA}, v{ACC} offset:{L_OP}")
    a(f"ds_write_b32 v{VPA}, v{ACC+4} offset:{L_OP+16}")
    a("s_waitcnt vmcnt(0) lgkmcnt(0)")
    a("s_barrier")
    a(f"v_and_b32 v{T}, 7, v{V_LANE}")
    a("s_lshl_b32 s3, s34, 5")
    a(f"v_lshl_add_u32 v{T}, v{T}, 2, s3")
    for w in range(16):
        a(f"ds_read_b32 v{S+w}, v{T} offset:{L_OP+w*512}")
    a("s_waitcnt lgkmcnt(0)")
    for st in (8, 4, 2, 1):
        for j in range(st):
            a(f"v_add_f32 v{S+j}, v{S+j}, v{S+j+st}")
    bf16r(a, S, S, SM)
    for i in range(8):
        a(f"v_readlane_b32 s{64+i}, v{S}, {i}")
    for i in range(8):
        a(f"s_lshr_b32 s{72+i}, s{64+i}, 16")
    for j in range(8): a(f"v_mov_b32 v{ACC+j}, 0")
    for i in range(8):
        for d in range(4):
            a(f"v_dot2_f32_bf16 v{ACC+2*d}, v{W+4*i+d}, s{72+i}, v{ACC+2*d}")
            a(f"v_dot2_f32_bf16 v{ACC+2*d+1}, v{W+4*i+d}, s{64+i}, v{ACC+2*d+1}")
    a("s_lshl_b32 s3, s34, 11")
    a(f"v_lshl_add_u32 v{T}, v{V_LANE}, 5, s3")
    a(f"ds_write_b128 v{T}, v[{ACC}:{ACC+3}] offset:{L_WO}")
    a(f"ds_write_b128 v{T}, v[{ACC+4}:{ACC+7}] offset:{L_WO+16}")
    a("s_waitcnt lgkmcnt(0)")
    a("s_barrier")
    a("s_cmp_ge_u32 s34, 8")
    a("s_cbranch_scc1 K1_SKIP_PART")
    a(f"v_lshlrev_b32 v{T}, 2, v0")
    for w in range(16):
        a(f"ds_read_b32 v{S+w}, v{T} offset:{L_WO+w*2048}")
    a("s_waitcnt lgkmcnt(0)")
    for st in (8, 4, 2, 1):
        for j in range(st):
            a(f"v_add_f32 v{S+j}, v{S+j}, v{S+j+st}")
    a("s_lshl_b32 s3, s2, 11")
    a(f"buffer_store_dword v{S}, v{T}, s[24:27], s3 offen offset:{WS_PART1} sc1")
    a("s_waitcnt vmcnt(0)")
    a("K1_SKIP_PART:")
    a("s_barrier")
    stamp(a, 5)
    a("s_cmp_lg_u32 s34, 0")
    a("s_cbranch_scc1 K1_SKIP_ATOM")
    a(f"v_cmp_eq_u32 vcc, 0, v0")
    a("s_and_saveexec_b64 s[66:67], vcc")
    a(f"v_mov_b32 v{T}, 1")
    a("s_lshl_b32 s3, s32, 2")
    a(f"v_mov_b32 v{T+1}, s3")
    a(f"buffer_atomic_add v{T}, v{T+1}, s[28:31], 0 offen sc0")
    a("s_waitcnt vmcnt(0)")
    a(f"v_mov_b32 v{T+1}, 0")
    a(f"ds_write_b32 v{T+1}, v{T} offset:{L_FLAG}")
    a("s_waitcnt lgkmcnt(0)")
    a("s_mov_b64 exec, s[66:67]")
    a("K1_SKIP_ATOM:")
    a("s_barrier")
    a(f"v_mov_b32 v{T+1}, 0")
    a(f"ds_read_b32 v{T}, v{T+1} offset:{L_FLAG}")
    a("s_waitcnt lgkmcnt(0)")
    a(f"v_readfirstlane_b32 s3, v{T}")
    a("s_cmp_lg_u32 s3, 31")
    a("s_cbranch_scc1 K1_END2")
    stamp(a, 6)
    a(f"v_and_b32 v{T}, 127, v0")
    a(f"v_lshrrev_b32 v{T+1}, 7, v0")
    a(f"v_lshlrev_b32 v{T+2}, 13, v{T+1}")
    a(f"v_lshl_add_u32 v{T+2}, v{T}, 4, v{T+2}")
    a("s_lshl_b32 s3, s32, 16")
    a("s_add_u32 s62, s3, 4096")
    for j in range(4):
        so = "s3" if j < 2 else "s62"
        a(f"buffer_load_dwordx4 v[{S+4*j}:{S+4*j+3}], v{T+2}, s[24:27], {so} offen offset:{WS_PART1+2048*(j%2)} sc1")
    a("s_waitcnt vmcnt(0)")
    for e in range(4):
        a(f"v_add_f32 v{S+e}, v{S+e}, v{S+4+e}")
        a(f"v_add_f32 v{S+8+e}, v{S+8+e}, v{S+12+e}")
        a(f"v_add_f32 v{S+e}, v{S+e}, v{S+8+e}")
    a(f"v_lshlrev_b32 v{T+1}, 11, v{T+1}")
    a(f"v_lshl_add_u32 v{T+1}, v{T}, 4, v{T+1}")
    a(f"ds_write_b128 v{T+1}, v[{S}:{S+3}] offset:{L_LA}")
    a("s_waitcnt lgkmcnt(0)")
    a("s_barrier")
    a("s_cmp_lg_u32 s34, 0")
    a("s_cbranch_scc1 K1_END2" if PERWAVE else "s_cbranch_scc1 K1_END")
    a(f"v_lshlrev_b32 v{T}, 5, v{V_LANE}")
    R = 16
    for gq in range(8):
        a(f"ds_read_b128 v[{R+8*gq}:{R+8*gq+3}], v{T} offset:{L_LA+gq*2048}")
        a(f"ds_read_b128 v[{R+8*gq+4}:{R+8*gq+7}], v{T} offset:{L_LA+gq*2048+16}")
    a("s_waitcnt lgkmcnt(0)")
    for st in (4, 2, 1):
        for gq in range(st):
            for j in range(8):
                a(f"v_add_f32 v{R+8*gq+j}, v{R+8*gq+j}, v{R+8*(gq+st)+j}")
    HX = R + 8
    for j in range(8): bf16r(a, R + j, R + j, SM)
    for d in range(4):
        a(f"v_lshlrev_b32 v{HX+2*d}, 16, v{XR+d}")
        a(f"v_and_b32 v{HX+2*d+1}, s{SM}, v{XR+d}")
    for j in range(8): a(f"v_add_f32 v{HX+j}, v{HX+j}, v{R+j}")
    HP = R + 16
    for d in range(4): a(f"v_cvt_pk_bf16_f32 v{HP+d}, v{HX+2*d}, v{HX+2*d+1}")
    for d in range(4):
        a(f"v_lshlrev_b32 v{HX+2*d}, 16, v{HP+d}")
        a(f"v_and_b32 v{HX+2*d+1}, s{SM}, v{HP+d}")
    a("s_lshl_b32 s3, s32, 10")
    a(f"s_add_u32 s3, s3, {WS_H}")
    a(f"buffer_store_dwordx4 v[{HP}:{HP+3}], v{V_KV}, s[24:27], s3 offen")
    layernorm(a, HX, R + 24, SM, 64)
    a(f"v_lshrrev_b32 v{T}, 1, v{V_LANE}")
    a(f"v_lshlrev_b32 v{T}, 8, v{T}")
    a(f"v_and_b32 v{T+1}, 1, v{V_LANE}")
    a(f"v_lshl_add_u32 v{T}, v{T+1}, 1, v{T}")
    a("s_lshl_b32 s3, s32, 2")
    a(f"s_add_u32 s3, s3, {WS_LN2P}")
    for j in range(8):
        a(f"buffer_store_short_d16_hi v{HX+j}, v{T}, s[24:27], s3 offen offset:{32*j}")
    a("K1_END2:")
    stamp_flush(a, 0, 24, T)
    a("K1_END:")
    a("s_endpgm")
    return lds_total

def gen_k2(a):
    L_RED, L_ACT, L_WD = 0, 16384, 16896
    lds_total = 16896 + 16384
    a.raw(f".globl {K2N}\n.p2align 8\n.type {K2N},@function\n{K2N}:")
    a(f"s_cmp_ge_u32 s2, {NW2}")
    a("s_cbranch_scc1 K2_END")
    a("s_load_dwordx2 s[40:41], s[0:1], 64")
    a("s_load_dwordx2 s[42:43], s[0:1], 88")
    stamp_init(a); stamp(a, 0)
    a("v_and_b32 v1, 63, v0")
    a("v_lshrrev_b32 v2, 6, v0")
    a("v_and_b32 v3, 7, v0")
    a("v_readfirstlane_b32 s34, v2")
    a("v_lshrrev_b32 v4, 3, v1")
    a("v_lshlrev_b32 v5, 4, v0")
    a("s_mov_b32 s35, 0xffff0000")
    SM = 35
    LNP = 16
    G = 32
    U = 36
    WD = 40
    ACC = 72
    T = 104
    a(f"v_lshl_add_u32 v{T}, v2, 4, v4")
    a(f"v_lshlrev_b32 v{T}, 5, v{T}")
    a("s_lshl_b32 s3, s2, 14")
    a(f"s_add_u32 s60, s3, {WS_GP}")
    a(f"s_add_u32 s61, s3, {WS_GP + WS_GPSZ}")
    a(f"s_mov_b32 s62, {WS_LN2P}")
    a("s_waitcnt lgkmcnt(0)")
    srd(a, 12, 40, 41, 1376 * 1024)
    srd(a, 16, 42, 43, WS_SIZE)
    a(f"buffer_load_dwordx4 v[{G}:{G+3}], v5, s[16:19], s60 offen")
    a(f"buffer_load_dwordx4 v[{U}:{U+3}], v5, s[16:19], s61 offen")
    for ip in range(2):
        for hf in range(2):
            a(f"buffer_load_dwordx4 v[{LNP+8*ip+4*hf}:{LNP+8*ip+4*hf+3}], v{T}, s[16:19], s62 offen offset:{256*ip+16*hf}")
    a(f"buffer_load_dwordx4 v[{WD}:{WD+3}], v5, s[12:15], s3 offen")
    for j in range(32): a(f"v_mov_b32 v{ACC+j}, 0")
    a("s_mov_b32 s60, 0x05040100")
    a("s_mov_b32 s61, 0x07060302")
    stamp(a, 1)
    a("s_waitcnt vmcnt(1)")
    stamp(a, 2)
    P = T + 4
    for ip in range(2):
        a(f"v_perm_b32 v{P}, v{G+2*ip+1}, v{G+2*ip}, s60")
        a(f"v_perm_b32 v{P+1}, v{G+2*ip+1}, v{G+2*ip}, s61")
        a(f"v_perm_b32 v{P+2}, v{U+2*ip+1}, v{U+2*ip}, s60")
        a(f"v_perm_b32 v{P+3}, v{U+2*ip+1}, v{U+2*ip}, s61")
        for b in range(8):
            for m in range(2):
                for c in range(2):
                    r = ACC + m * 16 + b * 2 + c
                    a(f"v_dot2_f32_bf16 v{r}, v{P+2*m+c}, v{LNP+8*ip+b}, v{r}")
    a("s_waitcnt vmcnt(0)")
    a(f"ds_write_b128 v5, v[{WD}:{WD+3}] offset:{L_WD}")
    for r in range(16): a(f"v_permlane32_swap_b32 v{ACC+r}, v{ACC+16+r}")
    for r in range(16): a(f"v_add_f32 v{ACC+r}, v{ACC+r}, v{ACC+16+r}")
    for b in range(8): a(f"v_permlane16_swap_b32 v{ACC+2*b}, v{ACC+2*b+1}")
    for b in range(8): a(f"v_add_f32 v{ACC+2*b}, v{ACC+2*b}, v{ACC+2*b+1}")
    X = ACC + 16
    for bp in range(4):
        a(f"v_add_f32_dpp v{X+bp}, v{ACC+4*bp}, v{ACC+4*bp} row_ror:8 row_mask:0xf bank_mask:0x3")
    for bp in range(4):
        a(f"v_add_f32_dpp v{X+bp}, v{ACC+4*bp+2}, v{ACC+4*bp+2} row_ror:8 row_mask:0xf bank_mask:0xc")
    a(f"v_lshrrev_b32 v{T}, 5, v1")
    a(f"v_lshlrev_b32 v{T}, 9, v{T}")
    a(f"v_bfe_u32 v{T+1}, v1, 3, 1")
    a(f"v_lshl_add_u32 v{T}, v{T+1}, 6, v{T}")
    a(f"v_lshl_add_u32 v{T}, v3, 3, v{T}")
    a(f"v_bfe_u32 v{T+1}, v1, 4, 1")
    a(f"v_lshl_add_u32 v{T}, v{T+1}, 2, v{T}")
    a(f"v_lshl_add_u32 v{T}, v2, 10, v{T}")
    for bp in range(4):
        a(f"ds_write_b32 v{T}, v{X+bp} offset:{L_RED+128*bp}")
    a("s_waitcnt lgkmcnt(0)")
    a("s_barrier")
    stamp(a, 3)
    a(f"v_and_b32 v{T+8}, 127, v0")
    a(f"v_lshlrev_b32 v{T+8}, 3, v{T+8}")
    for f in range(16):
        a(f"ds_read_b64 v[{WD+2*f}:{WD+2*f+1}], v{T+8} offset:{L_WD+1024*f}")
    a("s_cmp_ge_u32 s34, 2")
    a("s_cbranch_scc1 K2_SKIP_ACT")
    a(f"v_lshlrev_b32 v{T}, 2, v0")
    for w in range(16):
        a(f"ds_read2st64_b32 v[{ACC+2*w}:{ACC+2*w+1}], v{T} offset0:{4*w} offset1:{4*w+2}")
    a("s_waitcnt lgkmcnt(0)")
    for st in (8, 4, 2, 1):
        for j in range(st):
            a(f"v_add_f32 v{ACC+2*j}, v{ACC+2*j}, v{ACC+2*(j+st)}")
            a(f"v_add_f32 v{ACC+2*j+1}, v{ACC+2*j+1}, v{ACC+2*(j+st)+1}")
    g, u = ACC, ACC + 1
    bf16r(a, g, g, SM)
    bf16r(a, u, u, SM)
    a(f"v_mul_f32 v{T+1}, 0xbfb8aa3b, v{g}")
    a(f"v_exp_f32 v{T+1}, v{T+1}")
    a(f"v_add_f32 v{T+1}, 1.0, v{T+1}")
    a(f"v_rcp_f32 v{T+2}, v{T+1}")
    a(f"v_mul_f32 v{T+3}, v{g}, v{T+2}")
    a(f"v_fma_f32 v{T+4}, -v{T+3}, v{T+1}, v{g}")
    a(f"v_fma_f32 v{T+4}, v{T+4}, v{T+2}, v{T+3}")
    a(f"v_cmp_u_f32 vcc, v{T+4}, v{T+4}")
    a(f"v_cndmask_b32 v{T+3}, v{T+4}, v{T+3}, vcc")
    bf16r(a, T + 3, T + 3, SM)
    a(f"v_mul_f32 v{T+3}, v{T+3}, v{u}")
    bf16r(a, T + 3, T + 3, SM)
    a(f"ds_write_b32 v{T}, v{T+3} offset:{L_ACT}")
    a("s_waitcnt lgkmcnt(0)")
    a("K2_SKIP_ACT:")
    a("s_barrier")
    stamp(a, 4)
    a(f"v_lshrrev_b32 v{T}, 7, v0")
    a(f"v_lshlrev_b32 v{T+1}, 6, v{T}")
    AH = ACC; AL = ACC + 16
    for q in range(4):
        a(f"ds_read_b128 v[{AH+4*q}:{AH+4*q+3}], v{T+1} offset:{L_ACT+16*q}")
    O = T + 4
    for j in range(4): a(f"v_mov_b32 v{O+j}, 0")
    a("s_waitcnt lgkmcnt(0)")
    for f in range(16): a(f"v_lshrrev_b32 v{AL+f}, 16, v{AH+f}")
    for f in range(16):
        a(f"v_dot2_f32_bf16 v{O}, v{WD+2*f}, v{AL+f}, v{O}")
        a(f"v_dot2_f32_bf16 v{O+1}, v{WD+2*f}, v{AH+f}, v{O+1}")
        a(f"v_dot2_f32_bf16 v{O+2}, v{WD+2*f+1}, v{AL+f}, v{O+2}")
        a(f"v_dot2_f32_bf16 v{O+3}, v{WD+2*f+1}, v{AH+f}, v{O+3}")
    a(f"s_add_u32 s3, s3, {WS_PART2}")
    a(f"buffer_store_dwordx4 v[{O}:{O+3}], v5, s[16:19], s3 offen")
    stamp_flush(a, 1, 16, T)
    a("K2_END:")
    a("s_endpgm")
    return lds_total

def gen_k3(a):
    lds_total = 8192
    a.raw(f".globl {K3N}\n.p2align 8\n.type {K3N},@function\n{K3N}:")
    a("s_cmp_ge_u32 s2, 32")
    a("s_cbranch_scc1 K3_END")
    a("s_load_dwordx2 s[36:37], s[0:1], 72")
    a("s_load_dwordx2 s[38:39], s[0:1], 88")
    stamp_init(a); stamp(a, 0)
    a("v_and_b32 v1, 31, v0")
    a("v_lshrrev_b32 v2, 5, v0")
    a("s_mov_b32 s35, 0xffff0000")
    SM = 35
    a("s_waitcnt lgkmcnt(0)")
    srd(a, 4, 36, 37, 8192)
    srd(a, 8, 38, 39, WS_SIZE)
    a(f"s_add_u32 s40, s38, {WS_PART2}\ns_addc_u32 s41, s39, 0")
    srd(a, 12, 40, 41, NW2 * 16384)
    a("v_lshlrev_b32 v3, 14, v2")
    a("v_lshl_add_u32 v3, v1, 4, v3")
    a("s_lshl_b32 s3, s2, 9")
    for j in range(6):
        a(f"buffer_load_dwordx4 v[{8+4*j}:{11+4*j}], v3, s[12:15], s3 offen")
        if j < 5: a("s_add_u32 s3, s3, 262144")
    a("v_lshlrev_b32 v5, 2, v0")
    a("s_lshl_b32 s3, s2, 8")
    a(f"s_add_u32 s42, s3, {WS_H}")
    a("buffer_load_dword v6, v5, s[8:11], s42 offen")
    a("s_waitcnt vmcnt(1)")
    for e in range(4):
        a(f"v_add_f32 v{8+e}, v{8+e}, v{12+e}")
        a(f"v_add_f32 v{16+e}, v{16+e}, v{20+e}")
        a(f"v_add_f32 v{24+e}, v{24+e}, v{28+e}")
        a(f"v_add_f32 v{8+e}, v{8+e}, v{16+e}")
        a(f"v_add_f32 v{8+e}, v{8+e}, v{24+e}")
    a("v_lshlrev_b32 v4, 4, v0")
    a("ds_write_b128 v4, v[8:11]")
    a("s_waitcnt lgkmcnt(0)")
    a("s_barrier")
    a("v_readfirstlane_b32 s34, v0")
    a("s_cmp_ge_u32 s34, 64")
    a("s_cbranch_scc1 K3_END")
    a("v_lshlrev_b32 v4, 3, v0")
    for p in range(16):
        a(f"ds_read_b64 v[{8+2*p}:{9+2*p}], v4 offset:{512*p}")
    a("s_waitcnt vmcnt(0) lgkmcnt(0)")
    for st in (8, 4, 2, 1):
        for j in range(st):
            a(f"v_add_f32 v{8+2*j}, v{8+2*j}, v{8+2*(j+st)}")
            a(f"v_add_f32 v{9+2*j}, v{9+2*j}, v{9+2*(j+st)}")
    bf16r(a, 8, 8, SM)
    bf16r(a, 9, 9, SM)
    a("v_lshlrev_b32 v10, 16, v6")
    a(f"v_and_b32 v11, s{SM}, v6")
    a("v_add_f32 v8, v8, v10")
    a("v_add_f32 v9, v9, v11")
    a("v_cvt_pk_bf16_f32 v8, v8, v9")
    a("buffer_store_dword v8, v5, s[4:7], s3 offen")
    stamp_flush(a, 2, 8, 40)
    a("K3_END:")
    a("s_endpgm")
    return lds_total

def main(out):
    a = Asm()
    l1 = gen_k1(a)
    l2 = gen_k2(a)
    l3 = gen_k3(a)
    body = a.finish()
    txt = HEADER
    txt += f"; @launch kernel={NAME} grid=(256,1,1) block=(1024,1,1) lds={l1}\n"
    txt += f"; @launch kernel={K2N} grid=({NW2},1,1) block=(1024,1,1) lds={l2}\n"
    txt += f"; @launch kernel={K3N} grid=(32,1,1) block=(512,1,1) lds={l3}\n"
    txt += '.amdgcn_target "amdgcn-amd-amdhsa--gfx950"\n.text\n'
    txt += body
    txt += '.section .rodata,"a"\n'
    txt += kd(NAME, 128) + kd(K2N, 116) + kd(K3N, 48)
    open(out, "w").write(txt)

if __name__ == "__main__":
    if len(sys.argv) > 2 and sys.argv[2] == "stamps": STAMPS = True
    if len(sys.argv) > 3: PVAR = sys.argv[3]
    if len(sys.argv) > 4: PSTAMP = True
    if len(sys.argv) > 5: PERWAVE = True
    main(sys.argv[1] if len(sys.argv) > 1 else "sequential_preLN__mha_block_cached__swiglu_ffn__decode.s")
```
